```python
import torch

def _softmax(x, axis=-1):
    return torch.softmax(x, dim=axis)
def _gelu(x):
    return torch.nn.functional.gelu(x, approximate="tanh")
def _silu(x):
    return torch.nn.functional.silu(x)
def _sigmoid(x):
    return torch.sigmoid(x)
def _layernorm(x, axis=-1, eps=1e-5):
    m = x.mean(dim=axis, keepdim=True)
    v = x.var(dim=axis, keepdim=True, unbiased=False)
    return (x - m) / torch.sqrt(v + eps)
def _scatter_add(tgt, idx, src, axis=0):
    return tgt.clone().index_add_(axis, idx, src)
def _segment_sum(src, seg, n):
    out = torch.zeros((n,) + src.shape[1:], dtype=src.dtype)
    return out.index_add_(0, seg, src)
def _pad(x, pw):
    flat = tuple(v for pair in reversed(pw) for v in pair)
    return torch.nn.functional.pad(x, flat)

kernel_name = 'parallel_sum__mha_block_cached__glu_gated_bilinear__decode'

def setup_inputs():

    _w = (lambda a: (lambda t: t.to(torch.bfloat16) if t.is_floating_point() else t)(torch.as_tensor(a)))
    def _A_setup():
        B, Sq, D = 4, 1, 640
        H, Sk, Dh = 32, 4096, 128
        return {
            "x": _w((lambda *s: torch.randn(*s, dtype=torch.bfloat16) * 0.05)(B, Sq, D)),
            "k_cache": _w((lambda *s: torch.randn(*s, dtype=torch.bfloat16) * 1.6)(B, H, Sk, Dh)),
            "v_cache": _w((lambda *s: torch.randn(*s, dtype=torch.bfloat16) * 0.8)(B, H, Sk, Dh)),
            "wq": _w((lambda *s: torch.randn(*s, dtype=torch.bfloat16) * 1.6)(D, H * Dh) * (D ** -0.5)),
            "wo": _w((lambda *s: torch.randn(*s, dtype=torch.bfloat16) * 0.8)(H * Dh, D) * ((H * Dh) ** -0.5)),
        }
    _A_in = _A_setup()

    def _B_setup():
        B, S, D, F = 4, 1, 640, 1728
        return {
            "x": _w((lambda *s: torch.randn(*s, dtype=torch.bfloat16) * 0.05)(B, S, D)),
            "w_gate": _w((lambda *s: torch.randn(*s, dtype=torch.bfloat16) * 0.4)(D, F) * (D ** -0.5)),
            "w_up": _w((lambda *s: torch.randn(*s, dtype=torch.bfloat16) * 0.4)(D, F) * (D ** -0.5)),
            "w_down": _w((lambda *s: torch.randn(*s, dtype=torch.bfloat16) * 0.4)(F, D) * (F ** -0.5)),
        }
    _B_in = _B_setup()

    return {
        "A_x": _A_in["x"],
        "A_k_cache": _A_in["k_cache"],
        "A_v_cache": _A_in["v_cache"],
        "A_wq": _A_in["wq"],
        "A_wo": _A_in["wo"],
        "B_x": _B_in["x"],
        "B_w_gate": _B_in["w_gate"],
        "B_w_up": _B_in["w_up"],
        "B_w_down": _B_in["w_down"],
    }

def reference(A_x, A_k_cache, A_v_cache, A_wq, A_wo, B_x, B_w_gate, B_w_up, B_w_down):
    def _A_ref(x, k_cache, v_cache, wq, wo):
        B, Sq, D = x.shape
        H, Dh = 32, 128
        q = (lambda x, *d: x.permute(*d))((x @ wq).reshape(B, Sq, H, Dh), 0, 2, 1, 3)
        scores = torch.einsum("bhqd,bhkd->bhqk", q, k_cache) * (Dh ** -0.5)
        p = _softmax(scores, axis=-1)
        o = torch.einsum("bhqk,bhkd->bhqd", p, v_cache)
        return (lambda x, *d: x.permute(*d))(o, 0, 2, 1, 3).reshape(B, Sq, H * Dh) @ wo

    def _B_ref(x, w_gate, w_up, w_down):
        g = torch.einsum("bsd,df->bsf", x, w_gate)
        u = torch.einsum("bsd,df->bsf", x, w_up)
        h = g * u
        return torch.einsum("bsf,fd->bsd", h, w_down)

    x = A_x
    xn = _layernorm(x, axis=-1)
    return x + _A_ref(xn, A_k_cache, A_v_cache, A_wq, A_wo) + _B_ref(xn, B_w_gate, B_w_up, B_w_down)
```

```python
import re

TRANS = ("v_exp_f32", "v_log_f32", "v_rcp_f32", "v_rsq_f32", "v_sqrt_f32", "v_sin_f32", "v_cos_f32")

_reg_re = re.compile(r"^(v|s|a)(\d+)$|^(v|s|a)\[(\d+):(\d+)\]$")


def regs_of(tok):
    tok = tok.strip()
    if tok.startswith("-"):
        tok = tok[1:]
    if tok.startswith("abs(") and tok.endswith(")"):
        tok = tok[4:-1]
    if tok.startswith("|") and tok.endswith("|"):
        tok = tok[1:-1]
    if tok == "vcc":
        return [("s", 106), ("s", 107)]
    if tok == "exec":
        return [("s", 126), ("s", 127)]
    if tok == "m0":
        return [("s", 124)]
    m = _reg_re.match(tok)
    if not m:
        return []
    if m.group(1):
        return [(m.group(1), int(m.group(2)))]
    return [(m.group(3), i) for i in range(int(m.group(4)), int(m.group(5)) + 1)]


class Gen:
    def __init__(self):
        self.out = []
        self.pos = 0
        self.w = {}
        self.cread = {}
        self.stdata = {}
        self.nlabel = 0

    def raw(self, s):
        self.out.append(s)

    def comment(self, s):
        self.out.append("    ; " + s)

    def label(self, name):
        self.fence()
        self.out.append(name + ":")

    def newlabel(self, base="L"):
        self.nlabel += 1
        return "%s_%d" % (base, self.nlabel)

    def nop(self, n):
        while n > 0:
            k = min(n, 16)
            self.out.append("    s_nop %d" % (k - 1))
            self.pos += k
            n -= k

    def fence(self):
        need = 0
        for r, (p, kind) in self.w.items():
            d = {"valu": 2, "trans": 2, "dot": 3, "mfma": 8, "valu_s": 5}.get(kind, 0)
            need = max(need, d - (self.pos - p - 1))
        for r, p in self.cread.items():
            need = max(need, 3 - (self.pos - p - 1))
        for r, p in self.stdata.items():
            need = max(need, 2 - (self.pos - p - 1))
        if need > 0:
            self.nop(need)
        self.w.clear(); self.cread.clear(); self.stdata.clear()

    def __call__(self, text):
        text = text.strip()
        body = text.split(";")[0].strip()
        parts = body.split(None, 1)
        mn = parts[0]
        rest = parts[1] if len(parts) > 1 else ""
        ops, cur, depth = [], "", 0
        for ch in rest:
            if ch == "[":
                depth += 1
            if ch == "]":
                depth -= 1
            if ch == "," and depth == 0:
                ops.append(cur.strip()); cur = ""
            else:
                cur += ch
        if cur.strip():
            ops.append(cur.strip())
        mods = ""
        if ops:
            sp = ops[-1].split(None, 1)
            ops[-1] = sp[0]
            mods = sp[1] if len(sp) > 1 else ""
        is_mfma = mn.startswith("v_mfma")
        is_valu = mn.startswith("v_") and not is_mfma
        is_vmem = mn.startswith(("buffer_", "global_"))
        is_ds = mn.startswith("ds_")
        is_dpp = "_dpp" in mn or "row_" in mods or "quad_perm" in mods
        is_perm = mn.startswith("v_permlane")
        is_rl = mn.startswith(("v_readlane", "v_readfirstlane"))
        is_dot = mn.startswith("v_dot")
        base = mn.replace("_dpp", "").replace("_e32", "").replace("_e64", "")
        is_trans = base in TRANS
        R = [regs_of(o) for o in ops]
        writes, reads = [], []
        srcC = []
        if is_mfma:
            writes = R[0]; reads = R[1] + R[2]; srcC = R[3]
        elif is_valu:
            if is_perm:
                writes = R[0] + R[1]; reads = R[0] + R[1]
            elif base.startswith("v_cmp"):
                writes = R[0]; reads = sum(R[1:], [])
            elif base.startswith(("v_add_co", "v_sub_co", "v_addc_co", "v_subb_co")):
                writes = R[0] + R[1]; reads = sum(R[2:], [])
            else:
                writes = R[0]; reads = sum(R[1:], [])
                if base.startswith(("v_fmac", "v_dot2c", "v_mac")):
                    reads = reads + R[0]
                if is_dpp:
                    reads = reads + R[0]
                if base == "v_cndmask_b32" and len(ops) == 3:
                    reads = reads + regs_of("vcc")
        elif is_vmem:
            if "load" in mn:
                if " lds" in (" " + mods):
                    reads = sum(R, [])
                else:
                    writes = R[0]; reads = sum(R[1:], [])
            else:
                reads = sum(R, [])
        elif is_ds:
            if mn.startswith(("ds_read", "ds_bpermute", "ds_permute", "ds_swizzle")) or "_rtn" in mn:
                writes = R[0]; reads = sum(R[1:], [])
            else:
                reads = sum(R, [])
        else:
            if mn.startswith(("s_cmp", "s_cbranch", "s_branch", "s_waitcnt", "s_barrier", "s_nop", "s_sleep",
                              "s_endpgm", "s_setprio", "s_bitcmp")):
                reads = sum(R, [])
            else:
                writes = R[0] if R else []
                reads = sum(R[1:], [])
        need = 0

        def req(p, d):
            nonlocal need
            need = max(need, d - (self.pos - p - 1))

        dpp_src = R[1] if is_dpp and len(R) > 1 else []
        for r in set(reads + srcC):
            if r not in self.w:
                continue
            p, kind = self.w[r]
            if r[0] in "va":
                if kind in ("valu", "trans", "dot"):
                    if is_dpp and r in dpp_src: req(p, 2)
                    if is_dpp: req(p, 2)
                    if is_perm: req(p, 2)
                    if is_rl: req(p, 1)
                    if is_mfma: req(p, 2)
                if kind == "trans" and (is_valu or is_mfma or is_vmem or is_ds) and not is_trans: req(p, 1)
                if kind == "trans" and is_trans: req(p, 1)
                if kind == "dot":
                    same = is_dot and self.lastdot.get(r) == base
                    as_c = same and len(R) > 3 and r in R[3] and r not in R[1] + R[2]
                    as_c = as_c or (same and base.startswith("v_dot2c") and r in R[0] and r not in R[1] + R[2])
                    if not as_c: req(p, 3)
                if kind == "mfma":
                    if is_mfma and r in srcC and r not in reads:
                        if self.mfmaD.get(r) != tuple(srcC): req(p, 6)
                    else:
                        req(p, 8)
            else:
                if kind == "valu_s":
                    if is_valu or is_mfma: req(p, 4 if is_rl or base.startswith("v_writelane") else 2)
                    elif is_vmem: req(p, 5)
                    else: req(p, 2)
        for r in set(writes):
            if r in self.w:
                p, kind = self.w[r]
                if kind == "mfma" and not is_mfma: req(p, 8)
                if kind == "mfma" and is_mfma and self.mfmaD.get(r) != tuple(writes): req(p, 8)
                if kind == "dot" and not (is_dot and self.lastdot.get(r) == base): req(p, 3)
            if r in self.cread and is_valu: req(self.cread[r], 3)
            if r in self.stdata: req(self.stdata[r], 2)
        if mn.startswith(("s_cbranch", "s_branch", "s_endpgm")):
            self.fence()
        elif need > 0:
            self.nop(need)
        self.out.append("    " + text)
        if not hasattr(self, "lastdot"):
            self.lastdot = {}; self.mfmaD = {}
        for r in writes:
            if is_mfma:
                self.w[r] = (self.pos, "mfma"); self.mfmaD[r] = tuple(writes)
            elif is_valu:
                if r[0] == "s":
                    self.w[r] = (self.pos, "valu_s")
                elif is_trans:
                    self.w[r] = (self.pos, "trans")
                elif is_dot:
                    self.w[r] = (self.pos, "dot"); self.lastdot[r] = base
                else:
                    self.w[r] = (self.pos, "valu")
            else:
                self.w.pop(r, None)
        if is_mfma:
            for r in srcC:
                self.cread[r] = self.pos
        if is_vmem and ("store" in mn) and ("x4" in mn or "x3" in mn):
            for r in R[0]:
                self.stdata[r] = self.pos
        if mn == "s_nop":
            self.pos += int(ops[0]) + 1
        else:
            self.pos += 1

    lastdot = {}
    mfmaD = {}

    def text(self):
        return "\n".join(self.out) + "\n"
```

```python
import sys, argparse
from asmgen import Gen

NAME = "parallel_sum__mha_block_cached__glu_gated_bilinear__decode"

HEADER = """; Kernarg layout for this problem (96 bytes, ptrs only, base s[0:1]):
"""


def build(R=16, nt=True, kvmap="interleave", stamps=False, pfcode=False, wqbar=False, prio=False):
    g = Gen()
    NW = 8
    NLD = 64
    NIT = NLD // R
    GPI = R // 16
    assert R % 16 == 0
    NT = " nt" if nt else ""
    QP = 0
    QB = 4096
    FP = 6144
    MX = 8192
    LS = 8224
    OP = 8448
    OPS = 544
    YP = 13056
    LDS_BYTES = YP + 8 * 2560
    YA = 0
    YF = 655360
    ML = 1310720
    WS_BYTES = ML + 4096
    TS = 0x200000
    sK, sV, sWQ, sWO, sG, sU, sDN, sX, sOUT, sWS, sDBG, sISS = 8, 12, 16, 20, 24, 28, 32, 36, 40, 44, 48, 4
    P = 52
    s_w, s_b, s_h, s_s, s_j, s_jf, s_t0, s_t1, s_ld, s_st, s_it, s_hi = 76, 77, 78, 79, 80, 81, 82, 83, 84, 85, 86, 87
    s_m1, s_m0 = 88, 90
    s_t2, s_t3 = 92, 93
    s_ex = 94
    s_ts = 52

    def S(b, n=4): return "s[%d:%d]" % (b, b + n - 1)
    def V(b, n=4): return "v[%d:%d]" % (b, b + n - 1)
    vT, vL, vKV, vWQ, vWO, vG, vDN, vPUB = 0, 1, 2, 3, 4, 5, 6, 7
    vM = 8; vQ = 12; vS = 16; vACC = 20; vA = (24, 28); vP = 32
    vMB, vSD, vRC, vPB0, vPB1, vXF = 48, 49, 50, 51, 52, 53
    vt = [58, 59, 60, 61, 62, 63]
    vW = 64
    vR = 144
    NVGPR = vR + 4 * R
    if R == 32:
        raise SystemExit("R=32 needs the compact register map")
    nstamp = [0]

    def stamp():
        if stamps:
            k = nstamp[0]; nstamp[0] += 1
            g("s_memrealtime s[%d:%d]" % (s_ts + 2 * k, s_ts + 2 * k + 1))

    def allreduce(v, op, tmp):
        for m in ("quad_perm:[1,0,3,2]", "quad_perm:[2,3,0,1]", "row_half_mirror", "row_mirror"):
            g("%s_dpp v%d, v%d, v%d %s row_mask:0xf bank_mask:0xf" % (op, v, v, v, m))
        for sw in ("v_permlane16_swap_b32", "v_permlane32_swap_b32"):
            g("v_mov_b32 v%d, v%d" % (tmp, v))
            g("%s v%d, v%d" % (sw, tmp, v))
            g("%s v%d, v%d, v%d" % (op, v, v, tmp))

    def setprio_by_iter(tag):
        for k in range(1, NIT):
            g("s_cmp_eq_u32 s%d, %d" % (s_it, k))
            g("s_cbranch_scc1 L_P%s%d" % (tag, k))
        g("s_setprio 3")
        g("s_branch L_P%sE" % tag)
        for k in range(1, NIT):
            g.label("L_P%s%d" % (tag, k))
            g("s_setprio %d" % max(0, 3 - k * 4 // NIT if NIT <= 4 else 3 - k * 4 // NIT))
            if k < NIT - 1:
                g("s_branch L_P%sE" % tag)
        g.label("L_P%sE" % tag)

    def srd(d, ptr, off_sgpr, nbytes, off_hi=None):
        if off_sgpr is None:
            g("s_mov_b32 s%d, s%d" % (d, ptr))
            g("s_mov_b32 s%d, s%d" % (d + 1, ptr + 1))
        else:
            g("s_add_u32 s%d, s%d, s%d" % (d, ptr, off_sgpr))
            g("s_addc_u32 s%d, s%d, 0" % (d + 1, ptr + 1))
        g("s_mov_b32 s%d, 0x%x" % (d + 2, nbytes))
        g("s_mov_b32 s%d, 0x20000" % (d + 3))

    g.raw(HEADER + "; @launch grid=(256,1,1) block=(512,1,1) lds=%d" % LDS_BYTES)
    g.raw('.amdgcn_target "amdgcn-amd-amdhsa--gfx950"')
    g.raw(".text")
    g.raw(".globl %s_kernel" % NAME)
    g.raw(".p2align 8")
    g.raw(".type %s_kernel,@function" % NAME)
    g.raw("%s_kernel:" % NAME)
    g("s_cmp_ge_u32 s2, 256")
    g("s_cbranch_scc1 L_END")
    g("s_load_dwordx16 s[52:67], s[0:1], 0")
    g("s_load_dwordx8 s[68:75], s[0:1], 64")
    if pfcode:
        g("s_getpc_b64 s[96:97]")
        g("v_lshlrev_b32 v%d, 7, v0" % vt[0])
        g("v_cmp_gt_u32 vcc, 0x%x, v%d" % (pfcode, vt[0]))
        g("s_and_saveexec_b64 s[%d:%d], vcc" % (s_ex, s_ex + 1))
        g("s_cbranch_execz L_PFSKIP")
        g("global_load_dword v%d, v%d, s[96:97]" % (vt[1], vt[0]))
        g.label("L_PFSKIP")
        g("s_mov_b64 exec, s[%d:%d]" % (s_ex, s_ex + 1))
    g("v_and_b32 v%d, 63, v0" % vL)
    g("v_lshrrev_b32 v%d, 6, v0" % vt[0])
    g("v_readfirstlane_b32 s%d, v%d" % (s_w, vt[0]))
    g("s_and_b32 s%d, s2, 7" % s_t0)
    g("s_lshr_b32 s%d, s2, 3" % s_t1)
    g("s_and_b32 s%d, s%d, 3" % (s_t2, s_t1))
    g("s_lshl_b32 s%d, s%d, 2" % (s_h, s_t0))
    g("s_add_u32 s%d, s%d, s%d" % (s_h, s_h, s_t2))
    g("s_lshr_b32 s%d, s%d, 3" % (s_b, s_t1))
    g("s_lshr_b32 s%d, s%d, 2" % (s_s, s_t1))
    g("s_and_b32 s%d, s%d, 1" % (s_s, s_s))
    g("s_lshl_b32 s%d, s%d, 1" % (s_j, s_h))
    g("s_add_u32 s%d, s%d, s%d" % (s_j, s_j, s_s))
    g("s_lshl_b32 s%d, s%d, 4" % (s_jf, s_t2))
    g("s_lshl_b32 s%d, s%d, 1" % (s_t0, s_t0))
    g("s_add_u32 s%d, s%d, s%d" % (s_jf, s_jf, s_t0))
    g("s_add_u32 s%d, s%d, s%d" % (s_jf, s_jf, s_s))
    g("s_mov_b32 s%d, 0xffff0000" % s_hi)
    g("s_mov_b32 s%d, 0xcccccccc" % s_m1)
    g("s_mov_b32 s%d, 0xcccccccc" % (s_m1 + 1))
    g("s_mov_b32 s%d, 0xaaaaaaaa" % s_m0)
    g("s_mov_b32 s%d, 0xaaaaaaaa" % (s_m0 + 1))
    g("s_lshl_b32 s%d, s%d, 5" % (s_t0, s_b))
    g("s_add_u32 s%d, s%d, s%d" % (s_t0, s_t0, s_h))
    g("s_lshl_b32 s%d, s%d, 1" % (s_t0, s_t0))
    g("s_add_u32 s%d, s%d, s%d" % (s_t0, s_t0, s_s))
    g("s_lshl_b32 s%d, s%d, 19" % (s_t0, s_t0))
    g("s_lshl_b32 s%d, s%d, 8" % (s_t1, s_h))
    g("s_mul_i32 s%d, s%d, 1280" % (s_t2, s_b))
    gq, cq, wv = vt[1], vt[2], vt[0]
    g("v_bfe_u32 v%d, v0, 4, 2" % gq)
    g("v_and_b32 v%d, 15, v0" % cq)
    if kvmap == "interleave":
        g("v_lshlrev_b32 v%d, 4, v0" % vKV)
        KVSTEP = 8192
    else:
        g("v_lshlrev_b32 v%d, 4, v%d" % (vKV, vL))
        g("v_lshl_add_u32 v%d, v%d, 16, v%d" % (vKV, wv, vKV))
        KVSTEP = 1024
    g("v_mul_u32_u24 v%d, 80, v%d" % (vt[3], wv))
    g("v_add_u32 v%d, v%d, v%d" % (vt[4], vt[3], gq))
    g("v_lshlrev_b32 v%d, 13, v%d" % (vWQ, vt[4]))
    g("v_lshl_add_u32 v%d, v%d, 4, v%d" % (vWQ, cq, vWQ))
    g("v_lshl_add_u32 v%d, v%d, 2, v%d" % (vPB0, cq, vt[4]))
    g("v_lshlrev_b32 v%d, 1, v%d" % (vPB0, vPB0))
    g("v_and_b32 v%d, 3, v0" % vt[5])
    g("v_lshl_add_u32 v%d, v%d, 2, v%d" % (vPB1, vt[5], vt[4]))
    g("v_lshlrev_b32 v%d, 1, v%d" % (vPB1, vPB1))
    g("v_lshrrev_b32 v%d, 2, v%d" % (vG, vL))
    g("v_add_u32 v%d, v%d, v%d" % (vG, vG, vt[3]))
    g("v_lshlrev_b32 v%d, 1, v%d" % (vXF + 4, vG))
    g("v_lshlrev_b32 v%d, 4, v%d" % (vP, vL))
    g("v_lshlrev_b32 v%d, 2, v%d" % (vP + 4, vL))
    g("s_waitcnt lgkmcnt(0)")
    srd(sX, P + 0, s_t2, 1280)
    srd(sWQ, P + 6, s_t1, 640 * 8192 - 31 * 256)
    stampfirst = True
    g("buffer_load_dword v%d, v%d, %s, 0 offen offset:1024" % (vP + 4, vP + 4, S(sX)))
    g("buffer_load_dwordx4 %s, v%d, %s, 0 offen" % (V(vP), vP, S(sX)))
    g("buffer_load_ushort v%d, v%d, %s, 0 offen" % (vPB0, vPB0, S(sX)))
    g("buffer_load_ushort v%d, v%d, %s, 0 offen offset:128" % (vPB1, vPB1, S(sX)))
    for t in range(5):
        g("buffer_load_ushort v%d, v%d, %s, 0 offen offset:%d" % (vXF + t, vXF + 4, S(sX), 32 * t))
    srd(sK, P + 2, s_t0, 1 << 19)
    srd(sISS, P + 2, s_t0, 1 << 19)
    srd(sV, P + 4, s_t0, 1 << 19)

    def wq_loads():
        g("s_mov_b32 s%d, 0" % s_ld)
        g("s_mov_b32 s%d, 0x8000" % s_st)
        for t in range(20):
            g("buffer_load_dwordx4 %s, v%d, %s, s%d offen" % (V(vW + 4 * t), vWQ, S(sWQ), s_ld))
            if t < 19:
                g("s_add_u32 s%d, s%d, s%d" % (s_ld, s_ld, s_st))

    def ring_fill():
        g("s_mov_b32 s%d, 0" % s_ld)
        g("s_mov_b32 s%d, %d" % (s_st, KVSTEP))
        for i in range(R):
            g("buffer_load_dwordx4 %s, v%d, %s, s%d offen%s" % (V(vR + 4 * i), vKV, S(sK), s_ld, NT))
            g("s_add_u32 s%d, s%d, s%d" % (s_ld, s_ld, s_st))

    wq_loads()
    if wqbar:
        g("s_barrier")
    ring_fill()
    after_x = 20 + R
    g("s_mul_i32 s%d, s%d, %d" % (s_t0, s_h, 128 * 1280))
    srd(sWO, P + 8, s_t0, 128 * 1280)
    g("s_lshl_b32 s%d, s%d, 6" % (s_t0, s_jf))
    srd(sG, P + 12, s_t0, 640 * 3456 - 53 * 64)
    srd(sU, P + 14, s_t0, 640 * 3456 - 53 * 64)
    g("s_mul_i32 s%d, s%d, %d" % (s_t0, s_jf, 32 * 1280))
    srd(sDN, P + 16, s_t0, 32 * 1280)
    srd(sOUT, P + 18, s_t2, 1280)
    srd(sDBG, P + 20, None, 256)
    srd(sWS, P + 22, None, (TS + 0x100000) if stamps else WS_BYTES)
    stamp()
    g("v_mul_u32_u24 v%d, 3456, v%d" % (vG, vG))
    g("v_lshl_add_u32 v%d, v%d, 4, v%d" % (vG, vt[5], vG))
    g("v_lshl_add_u32 v%d, v%d, 4, v%d" % (vWO, wv, gq))
    g("v_mul_u32_u24 v%d, 1280, v%d" % (vWO, vWO))
    g("v_lshl_add_u32 v%d, v%d, 4, v%d" % (vWO, cq, vWO))
    g("v_mul_u32_u24 v%d, 1280, v%d" % (vDN, gq))
    g("v_lshl_add_u32 v%d, v%d, 4, v%d" % (vDN, cq, vDN))
    g("v_lshl_add_u32 v%d, v%d, 8, v%d" % (vDN, wv, vDN))
    g("v_and_b32 v%d, 1, v0" % vt[3])
    g("v_lshlrev_b32 v%d, 4, v%d" % (vt[3], vt[3]))
    g("v_mov_b32 v%d, 0xffff" % vt[4])
    g("v_lshlrev_b32 v%d, v%d, v%d" % (vt[3], vt[3], vt[4]))
    g("v_lshrrev_b32 v%d, 1, v%d" % (vt[4], cq))
    for r in range(4):
        g("v_cmp_eq_u32 vcc, %d, v%d" % (r, vt[4]))
        g("v_cndmask_b32 v%d, 0, v%d, vcc" % (vM + r, vt[3]))
    g("s_mul_i32 s%d, s%d, 163840" % (s_t0, s_b))
    g("s_and_b32 s%d, s%d, 3" % (s_t1, s_j))
    g("s_lshl_b32 s%d, s%d, 4" % (s_t1, s_t1))
    g("s_lshr_b32 s%d, s%d, 2" % (s_t2, s_j))
    g("s_add_u32 s%d, s%d, s%d" % (s_t1, s_t1, s_t2))
    g("s_lshl_b32 s%d, s%d, 6" % (s_t1, s_t1))
    g("s_add_u32 s%d, s%d, s%d" % (s_t1, s_t1, s_t0))
    g("s_lshl_b32 s%d, s%d, 6" % (s_t2, s_jf))
    g("s_add_u32 s%d, s%d, s%d" % (s_t2, s_t2, s_t0))
    g("s_add_u32 s%d, s%d, %d" % (s_t2, s_t2, YF))
    s_yf = s_t3
    g("s_mov_b32 s%d, s%d" % (s_yf, s_t2))
    g("s_lshl_b32 s%d, s%d, 6" % (s_t0, s_b))
    g("s_add_u32 s%d, s%d, s%d" % (s_t0, s_t0, s_j))
    g("s_lshl_b32 s%d, s%d, 4" % (s_t0, s_t0))
    g("s_add_u32 s%d, s%d, %d" % (s_t0, s_t0, ML))
    g("v_subrev_u32 v%d, 160, v0" % vt[3])
    g("v_cmp_gt_u32 vcc, 160, v0")
    g("v_cndmask_b32 v%d, v%d, v0, vcc" % (vt[3], vt[3]))
    g("v_mov_b32 v%d, s%d" % (vt[4], s_t2))
    g("v_mov_b32 v%d, s%d" % (vt[5], s_t1))
    g("v_cndmask_b32 v%d, v%d, v%d, vcc" % (vt[4], vt[4], vt[5]))
    g("v_lshrrev_b32 v%d, 2, v%d" % (vt[5], vt[3]))
    g("v_lshl_add_u32 v%d, v%d, 12, v%d" % (vt[4], vt[5], vt[4]))
    g("v_and_b32 v%d, 3, v%d" % (vt[5], vt[3]))
    g("v_lshl_add_u32 v%d, v%d, 4, v%d" % (vPUB, vt[5], vt[4]))
    g("v_mov_b32 v%d, s%d" % (vt[4], s_t0))
    g("v_cmp_eq_u32 vcc, 320, v0")
    g("v_cndmask_b32 v%d, v%d, v%d, vcc" % (vPUB, vPUB, vt[4]))
    g("v_mov_b32 v%d, 0x7ffffff0" % vt[4])
    g("v_cmp_lt_u32 vcc, 320, v0")
    g("v_cndmask_b32 v%d, v%d, v%d, vcc" % (vPUB, vPUB, vt[4]))
    for r in range(4):
        g("v_mov_b32 v%d, -1" % (vA[0] + r))
    g("buffer_store_dwordx4 %s, v%d, %s, 0 offen sc1" % (V(vA[0]), vPUB, S(sWS)))
    after_x += 1
    g("s_waitcnt vmcnt(%d)" % after_x)
    stamp()
    X = vP + 5
    for k in range(4):
        g("v_lshlrev_b32 v%d, 16, v%d" % (X + 2 * k, vP + k))
        g("v_and_b32 v%d, s%d, v%d" % (X + 2 * k + 1, s_hi, vP + k))
    g("v_lshlrev_b32 v%d, 16, v%d" % (X + 8, vP + 4))
    g("v_and_b32 v%d, s%d, v%d" % (X + 9, s_hi, vP + 4))
    sm = vt[0]
    g("v_add_f32 v%d, v%d, v%d" % (sm, X, X + 1))
    g("v_add_f32 v%d, v%d, v%d" % (vt[1], X + 2, X + 3))
    g("v_add_f32 v%d, v%d, v%d" % (vt[2], X + 4, X + 5))
    g("v_add_f32 v%d, v%d, v%d" % (vt[3], X + 6, X + 7))
    g("v_add_f32 v%d, v%d, v%d" % (vt[4], X + 8, X + 9))
    g("v_add_f32 v%d, v%d, v%d" % (sm, sm, vt[1]))
    g("v_add_f32 v%d, v%d, v%d" % (vt[2], vt[2], vt[3]))
    g("v_add_f32 v%d, v%d, v%d" % (sm, sm, vt[4]))
    g("v_add_f32 v%d, v%d, v%d" % (sm, sm, vt[2]))
    allreduce(sm, "v_add_f32", vt[1])
    g("v_mul_f32 v%d, 0x3acccccd, v%d" % (sm, sm))
    for k in range(10):
        g("v_sub_f32 v%d, v%d, v%d" % (X + k, X + k, sm))
    ss = vt[2]
    g("v_mul_f32 v%d, v%d, v%d" % (ss, X, X))
    g("v_mul_f32 v%d, v%d, v%d" % (vt[3], X + 1, X + 1))
    for k in range(2, 10, 2):
        g("v_fmac_f32 v%d, v%d, v%d" % (ss, X + k, X + k))
        g("v_fmac_f32 v%d, v%d, v%d" % (vt[3], X + k + 1, X + k + 1))
    g("v_add_f32 v%d, v%d, v%d" % (ss, ss, vt[3]))
    allreduce(ss, "v_add_f32", vt[1])
    g("v_mul_f32 v%d, 0x3acccccd, v%d" % (ss, ss))
    g("v_cvt_pk_bf16_f32 v%d, v%d, v%d" % (vt[1], sm, ss))
    g("v_lshlrev_b32 v%d, 16, v%d" % (vMB, vt[1]))
    g("v_and_b32 v%d, s%d, v%d" % (vt[1], s_hi, vt[1]))
    g("v_add_f32 v%d, 0x3727c5ac, v%d" % (vt[1], vt[1]))
    g("v_cvt_pk_bf16_f32 v%d, v%d, v%d" % (vt[1], vt[1], vt[1]))
    g("v_and_b32 v%d, s%d, v%d" % (vt[1], s_hi, vt[1]))
    g("v_sqrt_f32 v%d, v%d" % (vt[2], vt[1]))
    g("v_rcp_f32 v%d, v%d" % (vt[3], vt[2]))
    g("v_fma_f32 v%d, -v%d, v%d, v%d" % (vt[4], vt[2], vt[2], vt[1]))
    g("v_mul_f32 v%d, 0.5, v%d" % (vt[3], vt[3]))
    g("v_fmac_f32 v%d, v%d, v%d" % (vt[2], vt[4], vt[3]))
    g("v_cvt_pk_bf16_f32 v%d, v%d, v%d" % (vt[2], vt[2], vt[2]))
    g("v_and_b32 v%d, s%d, v%d" % (vSD, s_hi, vt[2]))
    g("v_rcp_f32 v%d, v%d" % (vRC, vSD))

    def normalize(v, tq, te):
        g("v_lshlrev_b32 v%d, 16, v%d" % (v, v))
        g("v_sub_f32 v%d, v%d, v%d" % (v, v, vMB))
        g("v_cvt_pk_bf16_f32 v%d, v%d, v%d" % (v, v, v))
        g("v_and_b32 v%d, s%d, v%d" % (v, s_hi, v))
        g("v_mul_f32 v%d, v%d, v%d" % (tq, v, vRC))
        g("v_fma_f32 v%d, -v%d, v%d, v%d" % (te, tq, vSD, v))
        g("v_fmac_f32 v%d, v%d, v%d" % (tq, te, vRC))
        g("v_cvt_pk_bf16_f32 v%d, v%d, v%d" % (v, tq, tq))

    normalize(vPB0, vt[0], vt[1])
    normalize(vPB1, vt[2], vt[3])

    def sparseA(dst, pb, lane):
        for r in range(4):
            g("v_and_b32_dpp v%d, v%d, v%d row_newbcast:%d row_mask:0xf bank_mask:0xf" % (dst + r, pb, vM + r, lane))

    sparseA(vA[0], vPB0, 0)
    for t in range(20):
        if t < 19:
            tn = t + 1
            sparseA(vA[tn & 1], vPB0 if tn < 16 else vPB1, tn & 15)
        g("s_waitcnt vmcnt(%d)" % (19 - t + R + 1))
        g("v_mfma_f32_16x16x32_bf16 %s, %s, %s, %s" % (V(vACC), V(vA[t & 1]), V(vW + 4 * t), "0" if t == 0 else V(vACC)))
    stamp()
    vLA = vWQ
    g("v_bfe_u32 v%d, v0, 4, 2" % vt[1])
    g("v_and_b32 v%d, 15, v0" % vt[2])
    g("v_lshrrev_b32 v%d, 6, v0" % vt[0])
    g("v_lshlrev_b32 v%d, 5, v%d" % (vt[3], vt[2]))
    g("v_lshl_add_u32 v%d, v%d, 4, v%d" % (vt[3], vt[1], vt[3]))
    g("v_lshl_add_u32 v%d, v%d, 9, v%d" % (vLA, vt[0], vt[3]))
    g("s_mov_b32 exec_hi, 0")
    g("ds_write_b128 v%d, %s offset:%d" % (vLA, V(vACC), QP))
    g("s_mov_b32 exec_hi, -1")
    g("s_cmp_ge_u32 s%d, 54" % s_jf)
    g("s_cbranch_scc1 L_NOFFNLD")
    g("s_mov_b32 s%d, 0" % s_t0)
    for t in range(5):
        g("buffer_load_dwordx4 %s, v%d, %s, s%d offen" % (V(vW + 4 * t), vG, S(sG), s_t0))
        g("buffer_load_dwordx4 %s, v%d, %s, s%d offen" % (V(vW + 20 + 4 * t), vG, S(sU), s_t0))
        if t < 4:
            g("s_add_u32 s%d, s%d, %d" % (s_t0, s_t0, 16 * 3456))
    g("s_cmp_ge_u32 s%d, 5" % s_w)
    g("s_cbranch_scc1 L_NOFFNLD")
    g("s_mov_b32 s%d, 0" % s_t0)
    for t in range(8):
        g("buffer_load_dwordx4 %s, v%d, %s, s%d offen" % (V(vW + 40 + 4 * t), vDN, S(sDN), s_t0))
        if t < 7:
            g("s_add_u32 s%d, s%d, 5120" % (s_t0, s_t0))
    g.label("L_NOFFNLD")
    g("v_lshlrev_b32 v%d, 3, v%d" % (vt[3], vL))
    g("s_waitcnt lgkmcnt(0)")
    g("s_barrier")
    for wv_ in range(8):
        g("ds_read_b64 %s, v%d offset:%d" % (V(vP + 2 * wv_, 2), vt[3], QP + 512 * wv_))
    g("v_lshlrev_b32 v%d, 8, v%d" % (vt[4], vt[0]))
    g("v_lshl_add_u32 v%d, v%d, 2, v%d" % (vt[5], vL, vt[4]))
    g("v_lshl_add_u32 v%d, v%d, 4, v%d" % (vt[4], vt[2], vt[4]))
    g("s_waitcnt lgkmcnt(0)")
    for step in (8, 4, 2):
        for k in range(0, step):
            g("v_add_f32 v%d, v%d, v%d" % (vP + k, vP + k, vP + k + step))
    g("v_cvt_pk_bf16_f32 v%d, v%d, v%d" % (vP, vP, vP + 1))
    g("ds_write_b32 v%d, v%d offset:%d" % (vt[5], vP, QB))
    g("s_waitcnt lgkmcnt(0)")
    g("ds_read_b128 %s, v%d offset:%d" % (V(vQ), vt[4], QB))
    g("s_mov_b32 s%d, 0" % s_it)
    g("s_waitcnt lgkmcnt(0)")
    stamp()
    g.label("L_KLOOP")
    g("s_cmp_eq_u32 s%d, %d" % (s_it, NIT - 1))
    g("s_cselect_b32 s%d, s%d, s%d" % (sISS, sV, sISS))
    g("s_cselect_b32 s%d, s%d, s%d" % (sISS + 1, sV + 1, sISS + 1))
    g("s_cselect_b32 s%d, 0, s%d" % (s_ld, s_ld))
    if prio: setprio_by_iter("K")
    for grp in range(GPI):
        for i in range(16):
            sl = grp * 16 + i
            b = vR + 4 * sl
            g("s_waitcnt vmcnt(%d)" % (R - 1))
            g("v_dot2_f32_bf16 v%d, v%d, v%d, 0" % (vP + i, b, vQ))
            for k in range(1, 4):
                g("v_dot2_f32_bf16 v%d, v%d, v%d, v%d" % (vP + i, b + k, vQ + k, vP + i))
            g("buffer_load_dwordx4 %s, v%d, %s, s%d offen%s" % (V(b), vKV, S(sISS), s_ld, NT))
            g("s_add_u32 s%d, s%d, s%d" % (s_ld, s_ld, s_st))
        for i in range(8):
            g("v_add_f32_dpp v%d, v%d, v%d row_ror:8 row_mask:0xf bank_mask:0x3" % (vP + i, vP + i, vP + i))
        for i in range(8):
            g("v_add_f32_dpp v%d, v%d, v%d row_ror:8 row_mask:0xf bank_mask:0xc" % (vP + i, vP + i + 8, vP + i + 8))
        for i in range(4):
            g("v_add_f32_dpp v%d, v%d, v%d row_half_mirror row_mask:0xf bank_mask:0x5" % (vP + i, vP + i, vP + i))
        for i in range(4):
            g("v_add_f32_dpp v%d, v%d, v%d row_half_mirror row_mask:0xf bank_mask:0xa" % (vP + i, vP + i + 4, vP + i + 4))
        for i in range(4):
            g("v_add_f32_dpp v%d, v%d, v%d quad_perm:[2,3,0,1] row_mask:0xf bank_mask:0xf" % (vP + i, vP + i, vP + i))
        for i in range(2):
            g("v_cndmask_b32 v%d, v%d, v%d, s[%d:%d]" % (vP + i, vP + i, vP + i + 2, s_m1, s_m1 + 1))
        for i in range(2):
            g("v_add_f32_dpp v%d, v%d, v%d quad_perm:[1,0,3,2] row_mask:0xf bank_mask:0xf" % (vP + i, vP + i, vP + i))
        for k in range(3):
            g("v_mov_b32 v%d, v%d" % (vS + k, vS + k + 1))
        g("v_cndmask_b32 v%d, v%d, v%d, s[%d:%d]" % (vS + 3, vP, vP + 1, s_m0, s_m0 + 1))
    g("s_add_u32 s%d, s%d, 1" % (s_it, s_it))
    g("s_cmp_lt_u32 s%d, %d" % (s_it, NIT))
    g("s_cbranch_scc1 L_KLOOP")
    stamp()
    g("v_cvt_pk_bf16_f32 v%d, v%d, v%d" % (vt[0], vS, vS + 1))
    g("v_cvt_pk_bf16_f32 v%d, v%d, v%d" % (vt[1], vS + 2, vS + 3))
    g("v_lshlrev_b32 v%d, 16, v%d" % (vS, vt[0]))
    g("v_and_b32 v%d, s%d, v%d" % (vS + 1, s_hi, vt[0]))
    g("v_lshlrev_b32 v%d, 16, v%d" % (vS + 2, vt[1]))
    g("v_and_b32 v%d, s%d, v%d" % (vS + 3, s_hi, vt[1]))
    for k in range(4):
        g("v_mul_f32 v%d, 0x3db504f3, v%d" % (vS + k, vS + k))
    g("v_cvt_pk_bf16_f32 v%d, v%d, v%d" % (vt[0], vS, vS + 1))
    g("v_cvt_pk_bf16_f32 v%d, v%d, v%d" % (vt[1], vS + 2, vS + 3))
    g("v_lshlrev_b32 v%d, 16, v%d" % (vS, vt[0]))
    g("v_and_b32 v%d, s%d, v%d" % (vS + 1, s_hi, vt[0]))
    g("v_lshlrev_b32 v%d, 16, v%d" % (vS + 2, vt[1]))
    g("v_and_b32 v%d, s%d, v%d" % (vS + 3, s_hi, vt[1]))
    mx = vt[0]
    g("v_max_f32 v%d, v%d, v%d" % (mx, vS, vS + 1))
    g("v_max3_f32 v%d, v%d, v%d, v%d" % (mx, mx, vS + 2, vS + 3))
    allreduce(mx, "v_max_f32", vt[1])
    g("v_lshrrev_b32 v%d, 6, v0" % vt[2])
    g("v_lshlrev_b32 v%d, 2, v%d" % (vt[2], vt[2]))
    g("ds_write_b32 v%d, v%d offset:%d" % (vt[2], mx, MX))
    g("s_cmp_ge_u32 s%d, 54" % s_jf)
    g("s_cbranch_scc1 L_NOFFN1")
    for t in range(5):
        normalize(vXF + t, vt[0], vt[1])
        g("v_and_b32 v%d, s%d, v%d" % (vXF + t, s_hi, vXF + t))
    for typ in range(2):
        for t in range(5):
            for k in range(4):
                src = vW + 20 * typ + 4 * t + k
                a0 = vP + 8 * typ + 2 * k
                op = "v_mul_f32" if t == 0 else "v_fmac_f32"
                ta, tb = (vt[0], vt[1]) if k & 1 else (vt[3], vt[4])
                g("v_lshlrev_b32 v%d, 16, v%d" % (ta, src))
                g("v_and_b32 v%d, s%d, v%d" % (tb, s_hi, src))
                g("%s v%d, v%d, v%d" % (op, a0, vXF + t, ta))
                g("%s v%d, v%d, v%d" % (op, a0 + 1, vXF + t, tb))
    for i in range(8):
        g("v_add_f32_dpp v%d, v%d, v%d row_ror:8 row_mask:0xf bank_mask:0x3" % (vP + i, vP + i, vP + i))
    for i in range(8):
        g("v_add_f32_dpp v%d, v%d, v%d row_ror:8 row_mask:0xf bank_mask:0xc" % (vP + i, vP + i + 8, vP + i + 8))
    for i in range(4):
        g("v_add_f32_dpp v%d, v%d, v%d row_shl:4 row_mask:0xf bank_mask:0x5" % (vP + i, vP + i, vP + i))
    for i in range(4):
        g("v_add_f32_dpp v%d, v%d, v%d row_shr:4 row_mask:0xf bank_mask:0xa" % (vP + i, vP + i + 4, vP + i + 4))
    for i in range(2):
        g("v_permlane16_swap_b32 v%d, v%d" % (vP + i, vP + i + 2))
    for i in range(2):
        g("v_add_f32 v%d, v%d, v%d" % (vP + i, vP + i, vP + i + 2))
    g("v_permlane32_swap_b32 v%d, v%d" % (vP, vP + 1))
    g("v_add_f32 v%d, v%d, v%d" % (vP, vP, vP + 1))
    g("v_bfe_u32 v%d, v0, 3, 1" % vt[0])
    g("v_lshlrev_b32 v%d, 5, v%d" % (vt[0], vt[0]))
    g("v_and_b32 v%d, 3, v0" % vt[1])
    g("v_lshl_add_u32 v%d, v%d, 3, v%d" % (vt[0], vt[1], vt[0]))
    g("v_bfe_u32 v%d, v0, 5, 1" % vt[1])
    g("v_add_u32 v%d, v%d, v%d" % (vt[0], vt[0], vt[1]))
    g("v_bfe_u32 v%d, v0, 4, 1" % vt[1])
    g("v_lshl_add_u32 v%d, v%d, 1, v%d" % (vt[0], vt[1], vt[0]))
    g("v_and_b32 v%d, 4, v0" % vt[1])
    g("v_add_u32 v%d, v%d, v%d" % (vt[0], vt[0], vt[1]))
    g("v_lshl_add_u32 v%d, v%d, 5, v%d" % (vt[0], vt[0], vt[2]))
    g("ds_write_b32 v%d, v%d offset:%d" % (vt[0], vP, FP))
    g.label("L_NOFFN1")
    g("v_mov_b32 v%d, 0" % vt[0])
    g("s_waitcnt lgkmcnt(0)")
    g("s_barrier")
    g("ds_read_b128 %s, v%d offset:%d" % (V(vP), vt[0], MX))
    g("ds_read_b128 %s, v%d offset:%d" % (V(vP + 4), vt[0], MX + 16))
    g("s_cmp_lg_u32 s%d, 0" % s_w)
    g("s_cbranch_scc1 L_NOCNT")
    g("s_lshl_b32 s%d, s%d, 6" % (s_t0, s_b))
    g("v_mov_b32 v%d, 1" % vt[1])
    g("v_mov_b32 v%d, s%d" % (vt[3], s_t0))
    g("s_mov_b64 exec, 1")
    g("buffer_atomic_add v%d, v%d, %s, 0 offen sc1" % (vt[1], vt[3], S(sDBG)))
    g("s_mov_b64 exec, -1")
    g.label("L_NOCNT")
    g("s_waitcnt lgkmcnt(0)")
    vMX = vMB
    g("v_max3_f32 v%d, v%d, v%d, v%d" % (vMX, vP, vP + 1, vP + 2))
    g("v_max3_f32 v%d, v%d, v%d, v%d" % (vt[0], vP + 3, vP + 4, vP + 5))
    g("v_max3_f32 v%d, v%d, v%d, v%d" % (vMX, vMX, vP + 6, vP + 7))
    g("v_max_f32 v%d, v%d, v%d" % (vMX, vMX, vt[0]))
    for k in range(4):
        g("v_sub_f32 v%d, v%d, v%d" % (vS + k, vS + k, vMX))
    for k in range(4):
        g("v_mul_f32 v%d, 0x3fb8aa3b, v%d" % (vS + k, vS + k))
    for k in range(4):
        g("v_exp_f32 v%d, v%d" % (vS + k, vS + k))
    g("v_add_f32 v%d, v%d, v%d" % (vt[0], vS, vS + 1))
    g("v_add_f32 v%d, v%d, v%d" % (vt[1], vS + 2, vS + 3))
    g("v_add_f32 v%d, v%d, v%d" % (vt[0], vt[0], vt[1]))
    for k in range(4):
        g("v_cvt_pk_bf16_f32 v%d, v%d, v%d" % (vS + k, vS + k, vS + k))
    allreduce(vt[0], "v_add_f32", vt[1])
    g("ds_write_b32 v%d, v%d offset:%d" % (vt[2], vt[0], LS))
    g("s_cmp_ge_u32 s%d, 54" % s_jf)
    g("s_cbranch_scc1 L_NOFFN2")
    g("s_cmp_ge_u32 s%d, 5" % s_w)
    g("s_cbranch_scc1 L_NOFFN2")
    g("v_and_b32 v%d, 15, v0" % vt[0])
    g("v_bfe_u32 v%d, v0, 4, 2" % vt[1])
    g("v_lshl_add_u32 v%d, v%d, 2, v%d" % (vt[3], vt[0], vt[1]))
    g("v_lshlrev_b32 v%d, 5, v%d" % (vt[3], vt[3]))
    g("ds_read_b128 %s, v%d offset:%d" % (V(vP), vt[3], FP))
    g("ds_read_b128 %s, v%d offset:%d" % (V(vP + 4), vt[3], FP + 16))
    g("v_lshrrev_b32 v%d, 1, v%d" % (vt[3], vt[0]))
    g("v_lshlrev_b32 v%d, 12, v%d" % (vt[3], vt[3]))
    g("v_lshl_add_u32 v%d, v%d, 4, v%d" % (vt[3], vt[1], vt[3]))
    g("v_and_b32 v%d, 1, v0" % vt[0])
    g("v_lshl_add_u32 v%d, v%d, 5, v%d" % (vt[3], vt[0], vt[3]))
    g("s_lshl_b32 s%d, s%d, 15" % (s_t0, s_w))
    g("s_add_u32 s%d, s%d, s%d" % (s_t0, s_t0, s_yf))
    g("s_waitcnt lgkmcnt(0)")
    for step in (4, 2, 1):
        for k in range(step):
            g("v_add_f32 v%d, v%d, v%d" % (vP + k, vP + k, vP + k + step))
    g("v_cvt_pk_bf16_f32 v%d, v%d, v%d" % (vP, vP, vP))
    g("v_and_b32 v%d, s%d, v%d" % (vP, s_hi, vP))
    g("v_mul_f32_dpp v%d, v%d, v%d row_ror:8 row_mask:0xf bank_mask:0xf" % (vP + 1, vP, vP))
    g("v_cvt_pk_bf16_f32 v%d, v%d, v%d" % (vP + 1, vP + 1, vP + 1))
    for t in range(8):
        sparseA(vA[t & 1], vP + 1, t)
        g("v_mfma_f32_16x16x32_bf16 %s, %s, %s, %s" % (V(vP + 4), V(vA[t & 1]), V(vW + 40 + 4 * t), "0" if t == 0 else V(vP + 4)))
    for k in range(4):
        g("v_min_u32 v%d, -2, v%d" % (vP + 4 + k, vP + 4 + k))
    g("s_mov_b32 exec_hi, 0")
    g("buffer_store_dwordx4 %s, v%d, %s, s%d offen sc1" % (V(vP + 4), vt[3], S(sWS), s_t0))
    g("s_mov_b64 exec, -1")
    g.label("L_NOFFN2")
    g("s_mov_b32 s%d, 0" % s_t0)
    for r4 in range(4):
        for cb in range(5):
            g("buffer_load_dwordx4 %s, v%d, %s, s%d offen offset:%d" % (V(vW + 4 * (r4 * 5 + cb)), vWO, S(sWO), s_t0, cb * 256))
        if r4 < 3:
            g("s_add_u32 s%d, s%d, 5120" % (s_t0, s_t0))
    for k in range(4):
        g("v_mov_b32 v%d, 0" % (vACC + k))
    g("s_mov_b32 s%d, 0" % s_it)
    stamp()
    g.label("L_VLOOP")
    if prio: setprio_by_iter("V")
    for grp in range(GPI):
        sparseA(vA[0], vS, 0)
        for i in range(16):
            sl = grp * 16 + i
            b = vR + 4 * sl
            if i < 15:
                sparseA(vA[(i + 1) & 1], vS, i + 1)
            g("s_waitcnt vmcnt(%d)" % (R - 1))
            g("v_mfma_f32_16x16x32_bf16 %s, %s, %s, %s" % (V(vACC), V(vA[i & 1]), V(b), V(vACC)))
            g("buffer_load_dwordx4 %s, v%d, %s, s%d offen%s" % (V(b), vKV, S(sV), s_ld, NT))
            g("s_add_u32 s%d, s%d, s%d" % (s_ld, s_ld, s_st))
        for k in range(3):
            g("v_mov_b32 v%d, v%d" % (vS + k, vS + k + 1))
    g("s_add_u32 s%d, s%d, 1" % (s_it, s_it))
    g("s_cmp_lt_u32 s%d, %d" % (s_it, NIT))
    g("s_cbranch_scc1 L_VLOOP")
    stamp()
    g("v_lshrrev_b32 v%d, 6, v0" % vt[0])
    g("v_lshl_add_u32 v%d, v%d, 5, v%d" % (vt[1], vt[0], vLA))
    g("s_mov_b32 exec_hi, 0")
    g("ds_write_b128 v%d, %s offset:%d" % (vt[1], V(vACC), OP))
    g("s_mov_b64 exec, -1")
    g("v_bfe_u32 v%d, v0, 2, 2" % vt[1])
    g("v_mul_u32_u24 v%d, %d, v%d" % (vt[1], 2 * OPS, vt[1]))
    g("v_lshl_add_u32 v%d, v%d, 6, v%d" % (vt[1], vt[0], vt[1]))
    g("v_and_b32 v%d, 3, v0" % vt[3])
    g("v_lshl_add_u32 v%d, v%d, 4, v%d" % (vt[1], vt[3], vt[1]))
    g("v_bfe_u32 v%d, v0, 4, 2" % vt[3])
    g("v_lshl_add_u32 v%d, v%d, 2, v%d" % (vt[1], vt[3], vt[1]))
    g("v_mov_b32 v%d, 0" % vt[3])
    g("s_waitcnt lgkmcnt(0)")
    g("s_barrier")
    g("ds_read_b32 v%d, v%d offset:%d" % (vt[4], vt[1], OP))
    g("ds_read_b32 v%d, v%d offset:%d" % (vt[5], vt[1], OP + OPS))
    g("ds_read_b128 %s, v%d offset:%d" % (V(vP), vt[3], LS))
    g("ds_read_b128 %s, v%d offset:%d" % (V(vP + 4), vt[3], LS + 16))
    g("s_waitcnt lgkmcnt(0)")
    g("v_add_f32 v%d, v%d, v%d" % (vt[4], vt[4], vt[5]))
    for step in (4, 2, 1):
        for k in range(step):
            g("v_add_f32 v%d, v%d, v%d" % (vP + k, vP + k, vP + k + step))
    g("v_add_f32_dpp v%d, v%d, v%d row_ror:4 row_mask:0xf bank_mask:0xf" % (vt[4], vt[4], vt[4]))
    g("v_rcp_f32 v%d, v%d" % (vt[5], vP))
    g("v_add_f32_dpp v%d, v%d, v%d row_ror:8 row_mask:0xf bank_mask:0xf" % (vt[4], vt[4], vt[4]))
    g("v_mul_f32 v%d, v%d, v%d" % (vt[4], vt[4], vt[5]))
    g("v_cvt_pk_bf16_f32 v%d, v%d, v%d" % (vt[4], vt[4], vt[4]))
    g("s_cmp_lg_u32 s%d, 5" % s_w)
    g("s_cbranch_scc1 L_NOML")
    g("v_min_u32 v%d, -2, v%d" % (vP + 4, vMX))
    g("v_min_u32 v%d, -2, v%d" % (vP + 5, vP))
    g("v_mov_b32 v%d, 0" % (vP + 6))
    g("v_mov_b32 v%d, 0" % (vP + 7))
    g("s_mov_b64 exec, 1")
    g("buffer_store_dwordx4 %s, v%d, %s, 0 offen sc1" % (V(vP + 4), vPUB, S(sWS)))
    g("s_mov_b64 exec, -1")
    g.label("L_NOML")
    vAA = vP
    for r4 in range(4):
        sparseA(vAA + 4 * r4, vt[4], r4)
    vY = vR
    g("s_waitcnt vmcnt(0)")
    for r4 in range(4):
        for cb in range(5):
            g("v_mfma_f32_16x16x32_bf16 %s, %s, %s, %s" % (V(vY + 4 * cb), V(vAA + 4 * r4), V(vW + 4 * (r4 * 5 + cb)),
                                                         "0" if r4 == 0 else V(vY + 4 * cb)))
    g("v_lshl_add_u32 v%d, v%d, 11, v%d" % (vt[1], vt[0], vLA))
    g("v_lshlrev_b32 v%d, 4, v0" % vt[3])
    g("s_mov_b32 exec_hi, 0")
    for cb in range(5):
        g("ds_write_b128 v%d, %s offset:%d" % (vt[1], V(vY + 4 * cb), YP + cb * 512))
    g("s_mov_b64 exec, -1")
    g("s_waitcnt lgkmcnt(0)")
    g("s_barrier")
    stamp()
    g("s_cmp_ge_u32 s%d, 3" % s_w)
    g("s_cbranch_scc1 L_NOPUB")
    g("v_cmp_gt_u32 vcc, 160, v0")
    g("s_and_saveexec_b64 s[%d:%d], vcc" % (s_ex, s_ex + 1))
    for wv_ in range(8):
        g("ds_read_b128 %s, v%d offset:%d" % (V(vW + 4 * wv_), vt[3], YP + 2560 * wv_))
    g("s_waitcnt lgkmcnt(0)")
    for step in (16, 8, 4):
        for k in range(step):
            g("v_add_f32 v%d, v%d, v%d" % (vW + k, vW + k, vW + k + step))
    for k in range(4):
        g("v_min_u32 v%d, -2, v%d" % (vW + k, vW + k))
    g("buffer_store_dwordx4 %s, v%d, %s, 0 offen sc1" % (V(vW), vPUB, S(sWS)))
    g("s_mov_b64 exec, -1")
    g.label("L_NOPUB")
    g("s_cmp_lg_u32 s%d, 7" % s_w)
    g("s_cbranch_scc1 L_FIN")
    g("s_cmp_ge_u32 s%d, 40" % s_j)
    g("s_cbranch_scc1 L_FIN")
    vX2 = vP
    vYL = vW
    vMLr = vW + 16
    vFa = vW + 24
    vAd = vt[0]
    g("v_lshlrev_b32 v%d, 4, v%d" % (vAd, vL))
    g("v_and_b32 v%d, 3, v0" % vt[1])
    g("v_lshlrev_b32 v%d, 3, v%d" % (vt[1], vt[1]))
    g("s_lshl_b32 s%d, s%d, 5" % (s_t1, s_j))
    g("buffer_load_dwordx2 %s, v%d, %s, s%d offen" % (V(vX2, 2), vt[1], S(sX), s_t1))
    g("s_mul_i32 s%d, s%d, 40" % (s_t0, s_b))
    g("s_add_u32 s%d, s%d, s%d" % (s_t0, s_t0, s_j))
    g("s_lshl_b32 s%d, s%d, 12" % (s_t0, s_t0))
    g("s_add_u32 s%d, s%d, %d" % (s_t2, s_t0, YF))
    g("v_lshrrev_b32 v%d, 2, v%d" % (vt[2], vL))
    g("v_lshlrev_b32 v%d, 6, v%d" % (vt[2], vt[2]))
    g("s_lshl_b32 s%d, s%d, 10" % (s_t3, s_b))
    g("s_add_u32 s%d, s%d, %d" % (s_t3, s_t3, ML))
    g("v_mov_b32 v%d, 0x7ffffff0" % vt[3])
    g("v_cmp_gt_u32 vcc, 24, v%d" % vL)
    g("v_cndmask_b32 v%d, v%d, v%d, vcc" % (vt[3], vt[3], vAd))
    g("s_lshl_b32 s%d, s%d, 6" % (s_ld, s_b))
    g("v_mov_b32 v%d, s%d" % (vt[4], s_ld))
    g("s_mov_b32 s%d, 0" % s_it)
    g.label("L_POLL0")
    g("buffer_load_dword v%d, v%d, %s, 0 offen sc1" % (vt[5], vt[4], S(sDBG)))
    g("s_add_u32 s%d, s%d, 1" % (s_it, s_it))
    g("s_waitcnt vmcnt(0)")
    g("v_cmp_gt_u32 vcc, 64, v%d" % vt[5])
    g("s_cbranch_vccz L_POLL1")
    g("s_sleep 2")
    g("s_cmp_lt_u32 s%d, 0x40000" % s_it)
    g("s_cbranch_scc1 L_POLL0")
    g.label("L_POLL1")
    for t in range(4):
        g("buffer_load_dwordx4 %s, v%d, %s, s%d offen offset:%d sc1" % (V(vYL + 4 * t), vAd if t < 3 else vt[3], S(sWS), s_t2, 1024 * t))
    g("s_add_u32 s%d, s%d, 1" % (s_it, s_it))
    g("s_waitcnt vmcnt(0)")

    def maxtree(regs, dst):
        regs = list(regs)
        g("v_max3_u32 v%d, v%d, v%d, v%d" % (dst, regs[0], regs[1], regs[2]))
        rest = regs[3:]
        while len(rest) >= 2:
            g("v_max3_u32 v%d, v%d, v%d, v%d" % (dst, dst, rest[0], rest[1])); rest = rest[2:]
        if rest:
            g("v_max_u32 v%d, v%d, v%d" % (dst, dst, rest[0]))

    maxtree(range(vYL, vYL + 16), vt[5])
    g("v_cmp_eq_u32 vcc, -1, v%d" % vt[5])
    g("s_cbranch_vccz L_FFNOK")
    g("s_sleep 2")
    g("s_cmp_lt_u32 s%d, 0x40000" % s_it)
    g("s_cbranch_scc1 L_POLL1")
    g.label("L_FFNOK")
    for k in range(4):
        g("v_add_f32 v%d, v%d, v%d" % (vFa + k, vYL + k, vYL + 4 + k))
        g("v_add_f32 v%d, v%d, v%d" % (vYL + 8 + k, vYL + 8 + k, vYL + 12 + k))
    for k in range(4):
        g("v_add_f32 v%d, v%d, v%d" % (vFa + k, vFa + k, vYL + 8 + k))

    def reduce_r(b4, tmp):
        for m in ("row_ror:4", "row_ror:8"):
            for k in range(4):
                g("v_add_f32_dpp v%d, v%d, v%d %s row_mask:0xf bank_mask:0xf" % (b4 + k, b4 + k, b4 + k, m))
        for sw in ("v_permlane16_swap_b32", "v_permlane32_swap_b32"):
            for k in range(4):
                g("v_mov_b32 v%d, v%d" % (tmp + k, b4 + k))
            for k in range(4):
                g("%s v%d, v%d" % (sw, tmp + k, b4 + k))
            for k in range(4):
                g("v_add_f32 v%d, v%d, v%d" % (b4 + k, b4 + k, tmp + k))

    reduce_r(vFa, vW + 28)
    g("v_cvt_pk_bf16_f32 v%d, v%d, v%d" % (vFa, vFa, vFa + 1))
    g("v_cvt_pk_bf16_f32 v%d, v%d, v%d" % (vFa + 2, vFa + 2, vFa + 3))
    g("v_and_b32 v%d, s%d, v%d" % (vFa + 1, s_hi, vFa))
    g("v_lshlrev_b32 v%d, 16, v%d" % (vFa, vFa))
    g("v_and_b32 v%d, s%d, v%d" % (vFa + 3, s_hi, vFa + 2))
    g("v_lshlrev_b32 v%d, 16, v%d" % (vFa + 2, vFa + 2))
    g("v_lshlrev_b32 v%d, 16, v%d" % (vP + 2, vX2))
    g("v_and_b32 v%d, s%d, v%d" % (vP + 3, s_hi, vX2))
    g("v_lshlrev_b32 v%d, 16, v%d" % (vP + 4, vX2 + 1))
    g("v_and_b32 v%d, s%d, v%d" % (vP + 5, s_hi, vX2 + 1))
    stamp()
    g.label("L_POLL2")
    for t in range(4):
        g("buffer_load_dwordx4 %s, v%d, %s, s%d offen offset:%d sc1" % (V(vYL + 4 * t), vAd, S(sWS), s_t0, 1024 * t))
    for t in range(4):
        g("buffer_load_dwordx2 %s, v%d, %s, s%d offen offset:%d sc1" % (V(vMLr + 2 * t, 2), vt[2], S(sWS), s_t3, 16 * t))
    g("s_add_u32 s%d, s%d, 1" % (s_it, s_it))
    g("s_waitcnt vmcnt(0)")
    maxtree(range(vYL, vYL + 24), vt[5])
    g("v_cmp_eq_u32 vcc, -1, v%d" % vt[5])
    g("s_cbranch_vccz L_ATTOK")
    g("s_sleep 1")
    g("s_cmp_lt_u32 s%d, 0x40000" % s_it)
    g("s_cbranch_scc1 L_POLL2")
    g.label("L_ATTOK")
    stamp()
    wt = vW + 28
    for p in range(2):
        m0, l0, m1, l1 = vMLr + 4 * p, vMLr + 4 * p + 1, vMLr + 4 * p + 2, vMLr + 4 * p + 3
        g("v_max_f32 v%d, v%d, v%d" % (vt[3 + p], m0, m1))
    for p in range(2):
        m0, l0, m1, l1 = vMLr + 4 * p, vMLr + 4 * p + 1, vMLr + 4 * p + 2, vMLr + 4 * p + 3
        g("v_sub_f32 v%d, v%d, v%d" % (m0, m0, vt[3 + p]))
        g("v_sub_f32 v%d, v%d, v%d" % (m1, m1, vt[3 + p]))
    for p in range(2):
        m0, m1 = vMLr + 4 * p, vMLr + 4 * p + 2
        g("v_mul_f32 v%d, 0x3fb8aa3b, v%d" % (m0, m0))
        g("v_mul_f32 v%d, 0x3fb8aa3b, v%d" % (m1, m1))
    for p in range(2):
        m0, m1 = vMLr + 4 * p, vMLr + 4 * p + 2
        g("v_exp_f32 v%d, v%d" % (m0, m0))
        g("v_exp_f32 v%d, v%d" % (m1, m1))
    for p in range(2):
        m0, l0, m1, l1 = vMLr + 4 * p, vMLr + 4 * p + 1, vMLr + 4 * p + 2, vMLr + 4 * p + 3
        g("v_mul_f32 v%d, v%d, v%d" % (m0, m0, l0))
        g("v_mul_f32 v%d, v%d, v%d" % (m1, m1, l1))
    for p in range(2):
        m0, m1 = vMLr + 4 * p, vMLr + 4 * p + 2
        g("v_add_f32 v%d, v%d, v%d" % (vt[3 + p], m0, m1))
    for p in range(2):
        g("v_rcp_f32 v%d, v%d" % (vt[3 + p], vt[3 + p]))
    for p in range(2):
        m0, m1 = vMLr + 4 * p, vMLr + 4 * p + 2
        g("v_mul_f32 v%d, v%d, v%d" % (wt + 2 * p, m0, vt[3 + p]))
        g("v_mul_f32 v%d, v%d, v%d" % (wt + 2 * p + 1, m1, vt[3 + p]))
    acc = vW + 32
    for t in range(4):
        for k in range(4):
            g("%s v%d, v%d, v%d" % ("v_mul_f32" if t == 0 else "v_fmac_f32", acc + k, wt + t, vYL + 4 * t + k))
    reduce_r(acc, vW + 36)
    g("v_cvt_pk_bf16_f32 v%d, v%d, v%d" % (acc, acc, acc + 1))
    g("v_cvt_pk_bf16_f32 v%d, v%d, v%d" % (acc + 2, acc + 2, acc + 3))
    g("v_and_b32 v%d, s%d, v%d" % (acc + 1, s_hi, acc))
    g("v_lshlrev_b32 v%d, 16, v%d" % (acc, acc))
    g("v_and_b32 v%d, s%d, v%d" % (acc + 3, s_hi, acc + 2))
    g("v_lshlrev_b32 v%d, 16, v%d" % (acc + 2, acc + 2))
    for k in range(4):
        g("v_add_f32 v%d, v%d, v%d" % (acc + k, acc + k, vP + 2 + k))
    g("v_cvt_pk_bf16_f32 v%d, v%d, v%d" % (acc, acc, acc + 1))
    g("v_cvt_pk_bf16_f32 v%d, v%d, v%d" % (acc + 2, acc + 2, acc + 3))
    g("v_and_b32 v%d, s%d, v%d" % (acc + 1, s_hi, acc))
    g("v_lshlrev_b32 v%d, 16, v%d" % (acc, acc))
    g("v_and_b32 v%d, s%d, v%d" % (acc + 3, s_hi, acc + 2))
    g("v_lshlrev_b32 v%d, 16, v%d" % (acc + 2, acc + 2))
    for k in range(4):
        g("v_add_f32 v%d, v%d, v%d" % (acc + k, acc + k, vFa + k))
    g("v_cvt_pk_bf16_f32 v%d, v%d, v%d" % (acc, acc, acc + 1))
    g("v_cvt_pk_bf16_f32 v%d, v%d, v%d" % (acc + 1, acc + 2, acc + 3))
    g("s_mov_b64 exec, 15")
    g("buffer_store_dwordx2 %s, v%d, %s, s%d offen" % (V(acc, 2), vt[1], S(sOUT), s_t1))
    g("s_mov_b64 exec, -1")
    g.label("L_FIN")
    if stamps:
        stamp()
        n = 11
        g("s_waitcnt lgkmcnt(0)")
        g("s_lshl_b32 s%d, s2, 3" % s_t0)
        g("s_add_u32 s%d, s%d, s%d" % (s_t0, s_t0, s_w))
        g("s_lshl_b32 s%d, s%d, 6" % (s_t0, s_t0))
        g("s_add_u32 s%d, s%d, 0x%x" % (s_t0, s_t0, TS))
        g("v_mov_b32 v1, 0")
        g("s_mov_b64 exec, 1")
        for k in range(nstamp[0]):
            g("v_mov_b32 v2, s%d" % (s_ts + 2 * k))
            g("buffer_store_dword v2, v1, %s, s%d offen offset:%d" % (S(sWS), s_t0, 4 * k))
    g.label("L_END")
    g("s_endpgm")
    g.raw('.section .rodata,"a"')
    g.raw(".p2align 6")
    g.raw(".amdhsa_kernel %s_kernel" % NAME)
    g.raw("  .amdhsa_next_free_vgpr %d" % NVGPR)
    g.raw("  .amdhsa_next_free_sgpr 100")
    g.raw("  .amdhsa_accum_offset %d" % ((NVGPR + 3) // 4 * 4))
    g.raw("  .amdhsa_group_segment_fixed_size 0")
    g.raw("  .amdhsa_kernarg_size 96")
    g.raw("  .amdhsa_user_sgpr_count 2")
    g.raw("  .amdhsa_user_sgpr_kernarg_segment_ptr 1")
    g.raw("  .amdhsa_system_sgpr_workgroup_id_x 1")
    g.raw(".end_amdhsa_kernel")
    return g.text()


if __name__ == "__main__":
    ap = argparse.ArgumentParser()
    ap.add_argument("-o", default="cdna_kernels/%s.s" % NAME)
    ap.add_argument("--R", type=int, default=16)
    ap.add_argument("--no-nt", action="store_true")
    ap.add_argument("--kvmap", default="interleave")
    ap.add_argument("--stamps", action="store_true")
    ap.add_argument("--wqbar", action="store_true")
    ap.add_argument("--prio", action="store_true")
    ap.add_argument("--pfcode", type=lambda x: int(x, 0), default=0)
    a = ap.parse_args()
    open(a.o, "w").write(build(R=a.R, nt=not a.no_nt, kvmap=a.kvmap, stamps=a.stamps, pfcode=a.pfcode, wqbar=a.wqbar, prio=a.prio))
```

```python
import sys, argparse
from asmgen import Gen
from gen import HEADER, NAME


def build(R=16, nt=True, stamps=False, HB=4, b0=True, hprio=0, sprio=0, RE=None, wnt=False, pf=0):
    g = Gen()
    NLD = 128
    G = max(R, 16)
    NIT = NLD // G
    GPI = G // 16
    NT = " nt" if nt else ""
    WNT = " nt" if wnt else ""
    if RE is None: RE = R
    QP = 0
    QB = 2048
    FP = 3072
    MX = 4096
    LS = 4112
    CNT = 4128
    OP = 4352
    OPS = 544
    YP = 6656
    LDS_BYTES = YP + 4 * 2560
    YA, YF, ML = 0, 655360, 1310720
    WS_BYTES = ML + 4096
    TS = 0x200000
    sK, sV, sWQ, sWO, sG, sU, sDN, sX, sOUT, sWS, sDBG, sISS = 8, 12, 16, 20, 24, 28, 32, 36, 40, 44, 48, 4
    P = 52
    s_w, s_b, s_h, s_s, s_j, s_jf, s_t0, s_t1, s_ld, s_st, s_it, s_hi = 76, 77, 78, 79, 80, 81, 82, 83, 84, 85, 86, 87
    s_m1, s_m0 = 88, 90
    s_t2, s_t3 = 92, 93
    s_ex = 94
    s_yf, s_xo = 96, 97
    s_ts = 52

    def S(b, n=4): return "s[%d:%d]" % (b, b + n - 1)
    def V(b, n=4): return "v[%d:%d]" % (b, b + n - 1)
    vL, vPUB, vLA = 1, 2, 3
    vM = 4
    vA = (8, 12)
    vACC = 16
    vt = [20, 21, 22, 23, 24, 25]
    vP = 28
    vKV = 26; vQ = 44; vS = 48
    vR = 64
    vWQ, vWO, vG, vDN = 26, 27, 44, 45
    vMB, vSD, vRC = 46, 47, 48
    vPB = 49
    vXF = 52
    vW = 64
    vY = 224
    vFa = 244
    NVGPR = 252
    stamp_idx = {}

    def stamp(k):
        if stamps:
            g("s_memrealtime s[%d:%d]" % (s_ts + 2 * k, s_ts + 2 * k + 1))

    def allreduce(v, op, tmp):
        for m in ("quad_perm:[1,0,3,2]", "quad_perm:[2,3,0,1]", "row_half_mirror", "row_mirror"):
            g("%s_dpp v%d, v%d, v%d %s row_mask:0xf bank_mask:0xf" % (op, v, v, v, m))
        for sw in ("v_permlane16_swap_b32", "v_permlane32_swap_b32"):
            g("v_mov_b32 v%d, v%d" % (tmp, v))
            g("%s v%d, v%d" % (sw, tmp, v))
            g("%s v%d, v%d, v%d" % (op, v, v, tmp))

    def srd(d, ptr, off_sgpr, nbytes):
        if off_sgpr is None:
            g("s_mov_b32 s%d, s%d" % (d, ptr))
            g("s_mov_b32 s%d, s%d" % (d + 1, ptr + 1))
        else:
            g("s_add_u32 s%d, s%d, s%d" % (d, ptr, off_sgpr))
            g("s_addc_u32 s%d, s%d, 0" % (d + 1, ptr + 1))
        g("s_mov_b32 s%d, 0x%x" % (d + 2, nbytes))
        g("s_mov_b32 s%d, 0x20000" % (d + 3))

    def sparseA(dst, pb, lane):
        for r in range(4):
            g("v_and_b32_dpp v%d, v%d, v%d row_newbcast:%d row_mask:0xf bank_mask:0xf" % (dst + r, pb, vM + r, lane))

    def unpack2(lo, hi, src):
        if lo == src:
            g("v_and_b32 v%d, s%d, v%d" % (hi, s_hi, src))
            g("v_lshlrev_b32 v%d, 16, v%d" % (lo, src))
        else:
            g("v_lshlrev_b32 v%d, 16, v%d" % (lo, src))
            g("v_and_b32 v%d, s%d, v%d" % (hi, s_hi, src))

    def masks_and_pub():
        g("v_and_b32 v%d, 1, v0" % vt[3])
        g("v_lshlrev_b32 v%d, 4, v%d" % (vt[3], vt[3]))
        g("v_mov_b32 v%d, 0xffff" % vt[4])
        g("v_lshlrev_b32 v%d, v%d, v%d" % (vt[3], vt[3], vt[4]))
        g("v_bfe_u32 v%d, v0, 1, 3" % vt[4])
        for r in range(4):
            g("v_cmp_eq_u32 vcc, %d, v%d" % (r, vt[4]))
            g("v_cndmask_b32 v%d, 0, v%d, vcc" % (vM + r, vt[3]))
        g("s_mul_i32 s%d, s%d, 163840" % (s_t0, s_b))
        g("s_and_b32 s%d, s%d, 3" % (s_t1, s_j))
        g("s_lshl_b32 s%d, s%d, 4" % (s_t1, s_t1))
        g("s_lshr_b32 s%d, s%d, 2" % (s_t2, s_j))
        g("s_add_u32 s%d, s%d, s%d" % (s_t1, s_t1, s_t2))
        g("s_lshl_b32 s%d, s%d, 6" % (s_t1, s_t1))
        g("s_add_u32 s%d, s%d, s%d" % (s_t1, s_t1, s_t0))
        g("s_lshl_b32 s%d, s%d, 6" % (s_yf, s_jf))
        g("s_add_u32 s%d, s%d, s%d" % (s_yf, s_yf, s_t0))
        g("s_add_u32 s%d, s%d, %d" % (s_yf, s_yf, YF))
        g("s_lshl_b32 s%d, s%d, 6" % (s_t0, s_b))
        g("s_add_u32 s%d, s%d, s%d" % (s_t0, s_t0, s_j))
        g("s_lshl_b32 s%d, s%d, 4" % (s_t0, s_t0))
        g("s_add_u32 s%d, s%d, %d" % (s_t0, s_t0, ML))
        ix = vt[2]
        g("v_xor_b32 v%d, 0x100, v0" % ix)
        g("v_subrev_u32 v%d, 160, v%d" % (vt[3], ix))
        g("v_cmp_gt_u32 vcc, 160, v%d" % ix)
        g("v_mov_b32 v%d, s%d" % (vt[4], s_yf))
        g("v_mov_b32 v%d, s%d" % (vt[5], s_t1))
        g("v_cndmask_b32 v%d, v%d, v%d, vcc" % (vt[3], vt[3], ix))
        g("v_cndmask_b32 v%d, v%d, v%d, vcc" % (vt[4], vt[4], vt[5]))
        g("v_lshrrev_b32 v%d, 2, v%d" % (vt[5], vt[3]))
        g("v_lshl_add_u32 v%d, v%d, 12, v%d" % (vt[4], vt[5], vt[4]))
        g("v_and_b32 v%d, 3, v%d" % (vt[5], vt[3]))
        g("v_lshl_add_u32 v%d, v%d, 4, v%d" % (vPUB, vt[5], vt[4]))
        g("v_cmp_eq_u32 vcc, 320, v%d" % ix)
        g("v_mov_b32 v%d, s%d" % (vt[4], s_t0))
        g("v_mov_b32 v%d, 0x7ffffff0" % vt[5])
        g("v_cndmask_b32 v%d, v%d, v%d, vcc" % (vPUB, vPUB, vt[4]))
        g("v_cmp_lt_u32 vcc, 320, v%d" % ix)
        for r in range(4):
            g("v_mov_b32 v%d, -1" % (vA[0] + r))
        g("v_cndmask_b32 v%d, v%d, v%d, vcc" % (vPUB, vPUB, vt[5]))
        g("buffer_store_dwordx4 %s, v%d, %s, 0 offen sc1" % (V(vA[0]), vPUB, S(sWS)))
        g("v_and_b32 v%d, 15, v0" % vt[3])
        g("v_bfe_u32 v%d, v0, 4, 2" % vt[4])
        g("v_bfe_u32 v%d, v0, 6, 2" % vt[5])
        g("v_lshlrev_b32 v%d, 5, v%d" % (vLA, vt[3]))
        g("v_lshl_add_u32 v%d, v%d, 4, v%d" % (vLA, vt[4], vLA))
        g("v_lshl_add_u32 v%d, v%d, 9, v%d" % (vLA, vt[5], vLA))

    g.raw(HEADER + "; @launch grid=(256,1,1) block=(512,1,1) lds=%d" % LDS_BYTES)
    g.raw('.amdgcn_target "amdgcn-amd-amdhsa--gfx950"')
    g.raw(".text")
    g.raw(".globl %s_kernel" % NAME)
    g.raw(".p2align 8")
    g.raw(".type %s_kernel,@function" % NAME)
    g.raw("%s_kernel:" % NAME)
    if stamps:
        g("s_memrealtime s[98:99]")
    g("s_cmp_ge_u32 s2, 256")
    g("s_cbranch_scc1 L_END")
    g("s_load_dwordx16 s[52:67], s[0:1], 0")
    g("s_load_dwordx8 s[68:75], s[0:1], 64")
    if pf:
        g("s_getpc_b64 s[4:5]")
        g("v_lshlrev_b32 v%d, 6, v0" % vt[1])
        g("v_min_u32 v%d, 0x%x, v%d" % (vt[1], pf, vt[1]))
        g("global_load_dword v%d, v%d, s[4:5] nt" % (vt[5], vt[1]))
    g("v_lshrrev_b32 v%d, 6, v0" % vt[0])
    g("v_and_b32 v%d, 63, v0" % vL)
    g("v_readfirstlane_b32 s%d, v%d" % (s_w, vt[0]))
    g("s_and_b32 s%d, s2, 7" % s_t0)
    g("s_lshr_b32 s%d, s2, 3" % s_t1)
    g("s_and_b32 s%d, s%d, 3" % (s_t2, s_t1))
    g("s_lshl_b32 s%d, s%d, 2" % (s_h, s_t0))
    g("s_add_u32 s%d, s%d, s%d" % (s_h, s_h, s_t2))
    g("s_lshr_b32 s%d, s%d, 3" % (s_b, s_t1))
    g("s_bfe_u32 s%d, s%d, 0x10002" % (s_s, s_t1))
    g("s_lshl_b32 s%d, s%d, 1" % (s_j, s_h))
    g("s_add_u32 s%d, s%d, s%d" % (s_j, s_j, s_s))
    g("s_lshl_b32 s%d, s%d, 4" % (s_jf, s_t2))
    g("s_lshl_b32 s%d, s%d, 1" % (s_t0, s_t0))
    g("s_add_u32 s%d, s%d, s%d" % (s_jf, s_jf, s_t0))
    g("s_add_u32 s%d, s%d, s%d" % (s_jf, s_jf, s_s))
    g("s_mov_b32 s%d, 0xffff0000" % s_hi)
    g("s_mul_i32 s%d, s%d, 1280" % (s_xo, s_b))
    g("s_cmp_ge_u32 s%d, 4" % s_w)
    g("s_cbranch_scc1 L_SWAVE")

    if hprio: g("s_setprio %d" % hprio)
    wv, gq, cq = vt[0], vt[1], vt[2]
    g("s_lshl_b32 s%d, s%d, 8" % (s_t1, s_h))
    g("v_bfe_u32 v%d, v0, 4, 2" % gq)
    g("v_and_b32 v%d, 15, v0" % cq)
    g("v_mul_u32_u24 v%d, 160, v%d" % (vt[3], wv))
    g("v_add_u32 v%d, v%d, v%d" % (vt[4], vt[3], gq))
    g("v_lshlrev_b32 v%d, 13, v%d" % (vWQ, vt[4]))
    g("v_lshl_add_u32 v%d, v%d, 4, v%d" % (vWQ, cq, vWQ))
    g("v_lshl_add_u32 v%d, v%d, 2, v%d" % (vPB + 2, cq, vt[4]))
    g("v_lshlrev_b32 v%d, 1, v%d" % (vPB + 2, vPB + 2))
    g("v_lshrrev_b32 v%d, 2, v%d" % (vG, vL))
    g("v_add_u32 v%d, v%d, v%d" % (vG, vG, vt[3]))
    g("v_lshlrev_b32 v%d, 1, v%d" % (vXF + 9, vG))
    g("v_lshlrev_b32 v%d, 4, v%d" % (vP, vL))
    g("v_lshlrev_b32 v%d, 2, v%d" % (vP + 4, vL))
    g("s_mov_b32 s%d, 0" % s_ld)
    g("s_mov_b32 s%d, 0x8000" % s_st)
    g("s_waitcnt lgkmcnt(0)")
    srd(sX, P + 0, s_xo, 1280)
    srd(sWQ, P + 6, s_t1, 640 * 8192 - 31 * 256)
    g("buffer_load_dword v%d, v%d, %s, 0 offen offset:1024" % (vP + 4, vP + 4, S(sX)))
    g("buffer_load_dwordx4 %s, v%d, %s, 0 offen" % (V(vP), vP, S(sX)))
    for k in range(3):
        g("buffer_load_ushort v%d, v%d, %s, 0 offen offset:%d" % (vPB + k, vPB + 2, S(sX), 128 * k))
    for t in range(40):
        g("buffer_load_dwordx4 %s, v%d, %s, s%d offen%s" % (V(vW + 4 * t), vWQ, S(sWQ), s_ld, WNT))
        if t < 39:
            g("s_add_u32 s%d, s%d, s%d" % (s_ld, s_ld, s_st))
    if b0:
        g("s_barrier")
    for t in range(10):
        g("buffer_load_ushort v%d, v%d, %s, 0 offen offset:%d" % (vXF + t, vXF + 9, S(sX), 32 * t))
    g("s_mul_i32 s%d, s%d, %d" % (s_t0, s_h, 128 * 1280))
    srd(sWO, P + 8, s_t0, 128 * 1280)
    g("s_lshl_b32 s%d, s%d, 6" % (s_t0, s_jf))
    srd(sG, P + 12, s_t0, 640 * 3456 - 53 * 64)
    srd(sU, P + 14, s_t0, 640 * 3456 - 53 * 64)
    g("s_mul_i32 s%d, s%d, %d" % (s_t0, s_jf, 32 * 1280))
    srd(sDN, P + 16, s_t0, 32 * 1280)
    srd(sOUT, P + 18, s_xo, 1280)
    srd(sDBG, P + 20, None, 256)
    srd(sWS, P + 22, None, (TS + 0x100000) if stamps else WS_BYTES)
    stamp(0)
    g("v_mul_u32_u24 v%d, 3456, v%d" % (vG, vG))
    g("v_and_b32 v%d, 3, v0" % vt[5])
    g("v_lshl_add_u32 v%d, v%d, 4, v%d" % (vG, vt[5], vG))
    g("v_lshl_add_u32 v%d, v%d, 5, v%d" % (vWO, wv, gq))
    g("v_mul_u32_u24 v%d, 1280, v%d" % (vWO, vWO))
    g("v_lshl_add_u32 v%d, v%d, 4, v%d" % (vWO, cq, vWO))
    g("v_mul_u32_u24 v%d, 1280, v%d" % (vDN, gq))
    g("v_lshl_add_u32 v%d, v%d, 4, v%d" % (vDN, cq, vDN))
    g("v_lshl_add_u32 v%d, v%d, 8, v%d" % (vDN, wv, vDN))
    masks_and_pub()
    g("v_mov_b32 v%d, 0" % vt[0])
    g("ds_write_b32 v%d, v%d offset:%d" % (vt[0], vt[0], CNT))
    g("s_waitcnt vmcnt(%d)" % (40 + 10 + 1))
    stamp(1)
    X = vP + 5
    for k in range(4):
        unpack2(X + 2 * k, X + 2 * k + 1, vP + k)
    unpack2(X + 8, X + 9, vP + 4)
    sm = vt[0]
    g("v_add_f32 v%d, v%d, v%d" % (sm, X, X + 1))
    g("v_add_f32 v%d, v%d, v%d" % (vt[1], X + 2, X + 3))
    g("v_add_f32 v%d, v%d, v%d" % (vt[2], X + 4, X + 5))
    g("v_add_f32 v%d, v%d, v%d" % (vt[3], X + 6, X + 7))
    g("v_add_f32 v%d, v%d, v%d" % (vt[4], X + 8, X + 9))
    g("v_add_f32 v%d, v%d, v%d" % (sm, sm, vt[1]))
    g("v_add_f32 v%d, v%d, v%d" % (vt[2], vt[2], vt[3]))
    g("v_add_f32 v%d, v%d, v%d" % (sm, sm, vt[4]))
    g("v_add_f32 v%d, v%d, v%d" % (sm, sm, vt[2]))
    allreduce(sm, "v_add_f32", vt[1])
    g("v_mul_f32 v%d, 0x3acccccd, v%d" % (sm, sm))
    for k in range(10):
        g("v_sub_f32 v%d, v%d, v%d" % (X + k, X + k, sm))
    ss = vt[2]
    g("v_mul_f32 v%d, v%d, v%d" % (ss, X, X))
    g("v_mul_f32 v%d, v%d, v%d" % (vt[3], X + 1, X + 1))
    for k in range(2, 10, 2):
        g("v_fmac_f32 v%d, v%d, v%d" % (ss, X + k, X + k))
        g("v_fmac_f32 v%d, v%d, v%d" % (vt[3], X + k + 1, X + k + 1))
    g("v_add_f32 v%d, v%d, v%d" % (ss, ss, vt[3]))
    allreduce(ss, "v_add_f32", vt[1])
    g("v_mul_f32 v%d, 0x3acccccd, v%d" % (ss, ss))
    g("v_cvt_pk_bf16_f32 v%d, v%d, v%d" % (vt[1], sm, ss))
    g("v_lshlrev_b32 v%d, 16, v%d" % (vMB, vt[1]))
    g("v_and_b32 v%d, s%d, v%d" % (vt[1], s_hi, vt[1]))
    g("v_add_f32 v%d, 0x3727c5ac, v%d" % (vt[1], vt[1]))
    g("v_cvt_pk_bf16_f32 v%d, v%d, v%d" % (vt[1], vt[1], vt[1]))
    g("v_and_b32 v%d, s%d, v%d" % (vt[1], s_hi, vt[1]))
    g("v_sqrt_f32 v%d, v%d" % (vt[2], vt[1]))
    g("v_rcp_f32 v%d, v%d" % (vt[3], vt[2]))
    g("v_fma_f32 v%d, -v%d, v%d, v%d" % (vt[4], vt[2], vt[2], vt[1]))
    g("v_mul_f32 v%d, 0.5, v%d" % (vt[3], vt[3]))
    g("v_fmac_f32 v%d, v%d, v%d" % (vt[2], vt[4], vt[3]))
    g("v_cvt_pk_bf16_f32 v%d, v%d, v%d" % (vt[2], vt[2], vt[2]))
    g("v_and_b32 v%d, s%d, v%d" % (vSD, s_hi, vt[2]))
    g("v_rcp_f32 v%d, v%d" % (vRC, vSD))

    def normalize(v, tq, te):
        g("v_lshlrev_b32 v%d, 16, v%d" % (v, v))
        g("v_sub_f32 v%d, v%d, v%d" % (v, v, vMB))
        g("v_cvt_pk_bf16_f32 v%d, v%d, v%d" % (v, v, v))
        g("v_and_b32 v%d, s%d, v%d" % (v, s_hi, v))
        g("v_mul_f32 v%d, v%d, v%d" % (tq, v, vRC))
        g("v_fma_f32 v%d, -v%d, v%d, v%d" % (te, tq, vSD, v))
        g("v_fmac_f32 v%d, v%d, v%d" % (tq, te, vRC))
        g("v_cvt_pk_bf16_f32 v%d, v%d, v%d" % (v, tq, tq))

    for k in range(3):
        normalize(vPB + k, vt[2 * k], vt[2 * k + 1])
    acc2 = (vACC, vP)
    sparseA(vA[0], vPB, 0)
    for t in range(40):
        if t < 39:
            tn = t + 1
            sparseA(vA[tn & 1], vPB + (tn >> 4), tn & 15)
        g("s_waitcnt vmcnt(%d)" % (39 - t + 11))
        g("v_mfma_f32_16x16x32_bf16 %s, %s, %s, %s" % (V(vACC), V(vA[t & 1]), V(vW + 4 * t), "0" if t == 0 else V(vACC)))
    g("s_mov_b32 exec_hi, 0")
    g("ds_write_b128 v%d, %s offset:%d" % (vLA, V(vACC), QP))
    g("s_mov_b32 exec_hi, -1")
    stamp(2)
    g("s_waitcnt vmcnt(0) lgkmcnt(0)")
    g("s_barrier")
    if hprio: g("s_setprio 0")
    g("s_cmp_lg_u32 s%d, 0" % s_w)
    g("s_cbranch_scc1 L_NOCNT")
    g("s_lshl_b32 s%d, s%d, 6" % (s_t0, s_b))
    g("v_mov_b32 v%d, 1" % vt[1])
    g("v_mov_b32 v%d, s%d" % (vt[3], s_t0))
    g("s_mov_b64 exec, 1")
    g("buffer_atomic_add v%d, v%d, %s, 0 offen sc1" % (vt[1], vt[3], S(sDBG)))
    g("s_mov_b64 exec, -1")
    g.label("L_NOCNT")
    g("s_cmp_ge_u32 s%d, 54" % s_jf)
    g("s_cbranch_scc1 L_NOFFN")
    paced = []
    for t in range(10):
        paced.append((vW + 4 * t, vG, sG, t * 16 * 3456, 0))
        paced.append((vW + 40 + 4 * t, vG, sU, t * 16 * 3456, 0))
    for t in range(8):
        paced.append((vW + 80 + 4 * t, vDN, sDN, t * 5120, 0))

    def paced_loads(lst):
        for i, (dst, va, sr, so, io) in enumerate(lst):
            if i >= HB:
                g("s_waitcnt vmcnt(%d)" % (HB - 1))
            g("s_mov_b32 s%d, %d" % (s_t0, so))
            g("buffer_load_dwordx4 %s, v%d, %s, s%d offen offset:%d%s" % (V(dst), va, S(sr), s_t0, io, WNT))

    paced_loads(paced)
    g("s_cmp_lg_u32 s%d, 0" % s_w)
    g("s_cbranch_scc1 L_NODN4")
    for t in range(8):
        g("s_waitcnt vmcnt(%d)" % (HB - 1))
        g("s_mov_b32 s%d, %d" % (s_t0, t * 5120))
        g("buffer_load_dwordx4 %s, v%d, %s, s%d offen offset:1024%s" % (V(vW + 112 + 4 * t), vDN, S(sDN), s_t0, WNT))
    g.label("L_NODN4")
    for t in range(10):
        normalize(vXF + t, vt[0], vt[1])
        g("v_and_b32 v%d, s%d, v%d" % (vXF + t, s_hi, vXF + t))
    g("s_waitcnt vmcnt(0)")
    for typ in range(2):
        for t in range(10):
            for k in range(4):
                src = vW + 40 * typ + 4 * t + k
                a0 = vP + 8 * typ + 2 * k
                op = "v_mul_f32" if t == 0 else "v_fmac_f32"
                ta, tb = (vt[0], vt[1]) if k & 1 else (vt[3], vt[4])
                unpack2(ta, tb, src)
                g("%s v%d, v%d, v%d" % (op, a0, vXF + t, ta))
                g("%s v%d, v%d, v%d" % (op, a0 + 1, vXF + t, tb))
    for i in range(8):
        g("v_add_f32_dpp v%d, v%d, v%d row_ror:8 row_mask:0xf bank_mask:0x3" % (vP + i, vP + i, vP + i))
    for i in range(8):
        g("v_add_f32_dpp v%d, v%d, v%d row_ror:8 row_mask:0xf bank_mask:0xc" % (vP + i, vP + i + 8, vP + i + 8))
    for i in range(4):
        g("v_add_f32_dpp v%d, v%d, v%d row_shl:4 row_mask:0xf bank_mask:0x5" % (vP + i, vP + i, vP + i))
    for i in range(4):
        g("v_add_f32_dpp v%d, v%d, v%d row_shr:4 row_mask:0xf bank_mask:0xa" % (vP + i, vP + i + 4, vP + i + 4))
    for i in range(2):
        g("v_permlane16_swap_b32 v%d, v%d" % (vP + i, vP + i + 2))
    for i in range(2):
        g("v_add_f32 v%d, v%d, v%d" % (vP + i, vP + i, vP + i + 2))
    g("v_permlane32_swap_b32 v%d, v%d" % (vP, vP + 1))
    g("v_add_f32 v%d, v%d, v%d" % (vP, vP, vP + 1))
    g("v_bfe_u32 v%d, v0, 3, 1" % vt[0])
    g("v_lshlrev_b32 v%d, 5, v%d" % (vt[0], vt[0]))
    g("v_and_b32 v%d, 3, v0" % vt[1])
    g("v_lshl_add_u32 v%d, v%d, 3, v%d" % (vt[0], vt[1], vt[0]))
    g("v_bfe_u32 v%d, v0, 5, 1" % vt[1])
    g("v_add_u32 v%d, v%d, v%d" % (vt[0], vt[0], vt[1]))
    g("v_bfe_u32 v%d, v0, 4, 1" % vt[1])
    g("v_lshl_add_u32 v%d, v%d, 1, v%d" % (vt[0], vt[1], vt[0]))
    g("v_and_b32 v%d, 4, v0" % vt[1])
    g("v_add_u32 v%d, v%d, v%d" % (vt[0], vt[0], vt[1]))
    g("v_lshrrev_b32 v%d, 6, v0" % vt[1])
    g("v_lshl_add_u32 v%d, v%d, 2, v%d" % (vt[0], vt[0], vt[1]))
    g("v_lshlrev_b32 v%d, 2, v%d" % (vt[0], vt[0]))
    g("ds_write_b32 v%d, v%d offset:%d" % (vt[0], vP, FP))
    g("v_mov_b32 v%d, 0" % vt[2])
    g("v_mov_b32 v%d, 1" % vt[3])
    g("s_waitcnt lgkmcnt(0)")
    g("s_mov_b64 exec, 1")
    g("ds_add_u32 v%d, v%d offset:%d" % (vt[2], vt[3], CNT))
    g("s_mov_b64 exec, -1")
    g("v_and_b32 v%d, 15, v0" % vt[0])
    g("v_bfe_u32 v%d, v0, 4, 2" % vt[1])
    g("v_lshl_add_u32 v%d, v%d, 2, v%d" % (vt[3], vt[0], vt[1]))
    g("v_lshlrev_b32 v%d, 4, v%d" % (vt[3], vt[3]))
    g("v_lshrrev_b32 v%d, 1, v%d" % (vt[4], vt[0]))
    g("v_lshlrev_b32 v%d, 12, v%d" % (vt[4], vt[4]))
    g("v_lshl_add_u32 v%d, v%d, 4, v%d" % (vt[4], vt[1], vt[4]))
    g("v_and_b32 v%d, 1, v0" % vt[0])
    g("v_lshl_add_u32 v%d, v%d, 5, v%d" % (vt[4], vt[0], vt[4]))
    g("s_lshl_b32 s%d, s%d, 15" % (s_t0, s_w))
    g("s_add_u32 s%d, s%d, s%d" % (s_t0, s_t0, s_yf))
    g.label("L_FSPIN")
    g("ds_read_b32 v%d, v%d offset:%d" % (vt[5], vt[2], CNT))
    g("s_waitcnt lgkmcnt(0)")
    g("v_cmp_gt_u32 vcc, 4, v%d" % vt[5])
    g("s_cbranch_vccz L_FGO")
    g("s_sleep 1")
    g("s_branch L_FSPIN")
    g.label("L_FGO")
    g("ds_read_b128 %s, v%d offset:%d" % (V(vP), vt[3], FP))
    g("s_waitcnt lgkmcnt(0)")
    g("v_add_f32 v%d, v%d, v%d" % (vP, vP, vP + 1))
    g("v_add_f32 v%d, v%d, v%d" % (vP + 2, vP + 2, vP + 3))
    g("v_add_f32 v%d, v%d, v%d" % (vP, vP, vP + 2))
    g("v_cvt_pk_bf16_f32 v%d, v%d, v%d" % (vP, vP, vP))
    g("v_and_b32 v%d, s%d, v%d" % (vP, s_hi, vP))
    g("v_mul_f32_dpp v%d, v%d, v%d row_ror:8 row_mask:0xf bank_mask:0xf" % (vP + 1, vP, vP))
    g("v_cvt_pk_bf16_f32 v%d, v%d, v%d" % (vP + 1, vP + 1, vP + 1))

    def down(base, acc):
        for t in range(8):
            sparseA(vA[t & 1], vP + 1, t)
            g("v_mfma_f32_16x16x32_bf16 %s, %s, %s, %s" % (V(acc), V(vA[t & 1]), V(base + 4 * t), "0" if t == 0 else V(acc)))
        for k in range(4):
            g("v_min_u32 v%d, -2, v%d" % (acc + k, acc + k))
        g("s_mov_b32 exec_hi, 0")
        g("buffer_store_dwordx4 %s, v%d, %s, s%d offen sc1" % (V(acc), vt[4], S(sWS), s_t0))
        g("s_mov_b32 exec_hi, -1")

    down(vW + 80, vP + 4)
    g("s_cmp_lg_u32 s%d, 0" % s_w)
    g("s_cbranch_scc1 L_NOFFN")
    g("s_add_u32 s%d, s%d, 0x%x" % (s_t0, s_yf, 4 << 15))
    down(vW + 112, vP + 8)
    g.label("L_NOFFN")
    stamp(3)
    paced_loads([(vW + 4 * (r4 * 5 + cb), vWO, sWO, r4 * 5120, cb * 256) for r4 in range(8) for cb in range(5)])
    stamp(4)

    def maxtree(regs, dst):
        regs = list(regs)
        g("v_max3_u32 v%d, v%d, v%d, v%d" % (dst, regs[0], regs[1], regs[2]))
        rest = regs[3:]
        while len(rest) >= 2:
            g("v_max3_u32 v%d, v%d, v%d, v%d" % (dst, dst, rest[0], rest[1])); rest = rest[2:]
        if rest:
            g("v_max_u32 v%d, v%d, v%d" % (dst, dst, rest[0]))

    def reduce_r(b4, tmp):
        for m in ("row_ror:4", "row_ror:8"):
            for k in range(4):
                g("v_add_f32_dpp v%d, v%d, v%d %s row_mask:0xf bank_mask:0xf" % (b4 + k, b4 + k, b4 + k, m))
        for sw in ("v_permlane16_swap_b32", "v_permlane32_swap_b32"):
            for k in range(4):
                g("v_mov_b32 v%d, v%d" % (tmp + k, b4 + k))
            for k in range(4):
                g("%s v%d, v%d" % (sw, tmp + k, b4 + k))
            for k in range(4):
                g("v_add_f32 v%d, v%d, v%d" % (b4 + k, b4 + k, tmp + k))

    def round4(a):
        g("v_cvt_pk_bf16_f32 v%d, v%d, v%d" % (a, a, a + 1))
        g("v_cvt_pk_bf16_f32 v%d, v%d, v%d" % (a + 2, a + 2, a + 3))
        unpack2(a, a + 1, a)
        unpack2(a + 2, a + 3, a + 2)

    vAd, vOo, vMla = vWQ, vG, vDN
    s_ya, s_ml, s_oo = s_ld, s_st, s_xo
    g("s_cmp_lg_u32 s%d, 3" % s_w)
    g("s_cbranch_scc1 L_NORED1")
    g("s_cmp_ge_u32 s%d, 40" % s_j)
    g("s_cbranch_scc1 L_NORED1")
    vYL = vP
    g("v_lshlrev_b32 v%d, 4, v%d" % (vAd, vL))
    g("v_and_b32 v%d, 3, v0" % vOo)
    g("v_lshlrev_b32 v%d, 3, v%d" % (vOo, vOo))
    g("s_lshl_b32 s%d, s%d, 5" % (s_oo, s_j))
    g("buffer_load_dwordx2 %s, v%d, %s, s%d offen" % (V(vFa + 4, 2), vOo, S(sX), s_oo))
    g("s_mul_i32 s%d, s%d, 40" % (s_ya, s_b))
    g("s_add_u32 s%d, s%d, s%d" % (s_ya, s_ya, s_j))
    g("s_lshl_b32 s%d, s%d, 12" % (s_ya, s_ya))
    g("s_add_u32 s%d, s%d, %d" % (s_t2, s_ya, YF))
    g("v_lshrrev_b32 v%d, 2, v%d" % (vMla, vL))
    g("v_lshlrev_b32 v%d, 6, v%d" % (vMla, vMla))
    g("s_lshl_b32 s%d, s%d, 10" % (s_ml, s_b))
    g("s_add_u32 s%d, s%d, %d" % (s_ml, s_ml, ML))
    g("v_mov_b32 v%d, 0x7ffffff0" % vt[3])
    g("v_cmp_gt_u32 vcc, 24, v%d" % vL)
    g("s_lshl_b32 s%d, s%d, 6" % (s_t0, s_b))
    g("v_mov_b32 v%d, s%d" % (vt[4], s_t0))
    g("v_cndmask_b32 v%d, v%d, v%d, vcc" % (vt[3], vt[3], vAd))
    g("s_mov_b32 s%d, 0" % s_it)
    g.label("L_POLL0")
    g("buffer_load_dword v%d, v%d, %s, 0 offen sc1" % (vt[5], vt[4], S(sDBG)))
    g("s_add_u32 s%d, s%d, 1" % (s_it, s_it))
    g("s_waitcnt vmcnt(0)")
    g("v_cmp_gt_u32 vcc, 64, v%d" % vt[5])
    g("s_cbranch_vccz L_POLL1")
    g("s_sleep 8")
    g("s_cmp_lt_u32 s%d, 0x40000" % s_it)
    g("s_cbranch_scc1 L_POLL0")
    g.label("L_POLL1")
    for t in range(4):
        g("buffer_load_dwordx4 %s, v%d, %s, s%d offen offset:%d sc1" % (V(vYL + 4 * t), vAd if t < 3 else vt[3], S(sWS), s_t2, 1024 * t))
    g("s_add_u32 s%d, s%d, 1" % (s_it, s_it))
    g("s_waitcnt vmcnt(0)")
    maxtree(range(vYL, vYL + 16), vt[5])
    g("v_cmp_eq_u32 vcc, -1, v%d" % vt[5])
    g("s_cbranch_vccz L_FFNOK")
    g("s_sleep 16")
    g("s_cmp_lt_u32 s%d, 0x40000" % s_it)
    g("s_cbranch_scc1 L_POLL1")
    g.label("L_FFNOK")
    for k in range(4):
        g("v_add_f32 v%d, v%d, v%d" % (vFa + k, vYL + k, vYL + 4 + k))
        g("v_add_f32 v%d, v%d, v%d" % (vYL + 8 + k, vYL + 8 + k, vYL + 12 + k))
    for k in range(4):
        g("v_add_f32 v%d, v%d, v%d" % (vFa + k, vFa + k, vYL + 8 + k))
    reduce_r(vFa, vYL)
    round4(vFa)
    unpack2(vFa + 6, vFa + 7, vFa + 5)
    unpack2(vFa + 4, vFa + 5, vFa + 4)
    g.label("L_NORED1")
    stamp(5)
    g("v_bfe_u32 v%d, v0, 3, 1" % vt[1])
    g("v_mul_u32_u24 v%d, %d, v%d" % (vt[1], 2 * OPS, vt[1]))
    g("v_lshrrev_b32 v%d, 6, v0" % vt[0])
    g("v_lshl_add_u32 v%d, v%d, 7, v%d" % (vt[1], vt[0], vt[1]))
    g("v_and_b32 v%d, 7, v0" % vt[3])
    g("v_lshl_add_u32 v%d, v%d, 4, v%d" % (vt[1], vt[3], vt[1]))
    g("v_bfe_u32 v%d, v0, 4, 2" % vt[3])
    g("v_lshl_add_u32 v%d, v%d, 2, v%d" % (vt[1], vt[3], vt[1]))
    g("v_mov_b32 v%d, 0" % vt[3])
    g("v_lshl_add_u32 v%d, v%d, 11, v%d" % (vt[2], vt[0], vLA))
    g("s_mov_b32 s%d, 0xff00ff00" % s_m1)
    g("s_mov_b32 s%d, 0xff00ff00" % (s_m1 + 1))
    g("s_waitcnt vmcnt(0)")
    if hprio: g("s_setprio %d" % hprio)
    g("s_barrier")
    g("ds_read_b128 %s, v%d offset:%d" % (V(vP), vt[3], MX))
    g("ds_read_b128 %s, v%d offset:%d" % (V(vP + 4), vt[3], LS))
    g("ds_read_b32 v%d, v%d offset:%d" % (vt[4], vt[1], OP))
    g("ds_read_b32 v%d, v%d offset:%d" % (vt[5], vt[1], OP + OPS))
    g("s_waitcnt lgkmcnt(2)")
    vMX = vMB
    g("v_max_f32 v%d, v%d, v%d" % (vMX, vP, vP + 1))
    g("v_max3_f32 v%d, v%d, v%d, v%d" % (vMX, vMX, vP + 2, vP + 3))
    for k in range(4):
        g("v_sub_f32 v%d, v%d, v%d" % (vP + k, vP + k, vMX))
    for k in range(4):
        g("v_mul_f32 v%d, 0x3fb8aa3b, v%d" % (vP + k, vP + k))
    for k in range(4):
        g("v_exp_f32 v%d, v%d" % (vP + k, vP + k))
    vLS = vSD
    g("v_mul_f32 v%d, v%d, v%d" % (vLS, vP, vP + 4))
    for k in range(1, 4):
        g("v_fmac_f32 v%d, v%d, v%d" % (vLS, vP + k, vP + 4 + k))
    g("v_cndmask_b32 v%d, v%d, v%d, s[%d:%d]" % (vP, vP, vP + 2, s_m1, s_m1 + 1))
    g("v_cndmask_b32 v%d, v%d, v%d, s[%d:%d]" % (vP + 1, vP + 1, vP + 3, s_m1, s_m1 + 1))
    g("v_rcp_f32 v%d, v%d" % (vRC, vLS))
    g("s_waitcnt lgkmcnt(0)")
    g("v_mul_f32 v%d, v%d, v%d" % (vt[4], vt[4], vP))
    g("v_fmac_f32 v%d, v%d, v%d" % (vt[4], vt[5], vP + 1))
    g("v_add_f32_dpp v%d, v%d, v%d row_ror:8 row_mask:0xf bank_mask:0xf" % (vt[4], vt[4], vt[4]))
    g("v_mul_f32 v%d, v%d, v%d" % (vt[4], vt[4], vRC))
    g("v_cvt_pk_bf16_f32 v%d, v%d, v%d" % (vt[4], vt[4], vt[4]))
    sparseA(vA[0], vt[4], 0)
    for r4 in range(8):
        if r4 < 7:
            sparseA(vA[(r4 + 1) & 1], vt[4], r4 + 1)
        for cb in range(5):
            g("v_mfma_f32_16x16x32_bf16 %s, %s, %s, %s" % (V(vY + 4 * cb), V(vA[r4 & 1]), V(vW + 4 * (r4 * 5 + cb)),
                                                         "0" if r4 == 0 else V(vY + 4 * cb)))
    g("s_cmp_lg_u32 s%d, 1" % s_w)
    g("s_cbranch_scc1 L_NOML")
    g("v_min_u32 v%d, -2, v%d" % (vP + 4, vMX))
    g("v_min_u32 v%d, -2, v%d" % (vP + 5, vLS))
    g("v_mov_b32 v%d, 0" % (vP + 6))
    g("v_mov_b32 v%d, 0" % (vP + 7))
    g("s_mov_b64 exec, 1")
    g("buffer_store_dwordx4 %s, v%d, %s, 0 offen sc1" % (V(vP + 4), vPUB, S(sWS)))
    g("s_mov_b64 exec, -1")
    g.label("L_NOML")
    g("s_mov_b32 exec_hi, 0")
    for cb in range(5):
        g("ds_write_b128 v%d, %s offset:%d" % (vt[2], V(vY + 4 * cb), YP + cb * 512))
    g("s_mov_b32 exec_hi, -1")
    g("s_waitcnt lgkmcnt(0)")
    g("s_barrier")
    stamp(7)
    g("s_cmp_lg_u32 s%d, 3" % s_w)
    g("s_cbranch_scc1 L_FIN")
    g("s_cmp_ge_u32 s%d, 40" % s_j)
    g("s_cbranch_scc1 L_FIN")
    vYL = vW; vMLr = vW + 16
    stamp(8)
    g.label("L_POLL2")
    for t in range(4):
        g("buffer_load_dwordx4 %s, v%d, %s, s%d offen offset:%d sc1" % (V(vYL + 4 * t), vAd, S(sWS), s_ya, 1024 * t))
    for t in range(4):
        g("buffer_load_dwordx2 %s, v%d, %s, s%d offen offset:%d sc1" % (V(vMLr + 2 * t, 2), vMla, S(sWS), s_ml, 16 * t))
    g("s_add_u32 s%d, s%d, 1" % (s_it, s_it))
    g("s_waitcnt vmcnt(0)")
    maxtree(range(vYL, vYL + 24), vt[5])
    g("v_cmp_eq_u32 vcc, -1, v%d" % vt[5])
    g("s_cbranch_vccz L_ATTOK")
    g("s_sleep 1")
    g("s_cmp_lt_u32 s%d, 0x40000" % s_it)
    g("s_cbranch_scc1 L_POLL2")
    g.label("L_ATTOK")
    stamp(9)
    wt = vW + 28
    M = lambda p, k: vMLr + 4 * p + k
    for p in range(2):
        g("v_max_f32 v%d, v%d, v%d" % (vt[3 + p], M(p, 0), M(p, 2)))
    for p in range(2):
        g("v_sub_f32 v%d, v%d, v%d" % (M(p, 0), M(p, 0), vt[3 + p]))
        g("v_sub_f32 v%d, v%d, v%d" % (M(p, 2), M(p, 2), vt[3 + p]))
    for p in range(2):
        g("v_mul_f32 v%d, 0x3fb8aa3b, v%d" % (M(p, 0), M(p, 0)))
        g("v_mul_f32 v%d, 0x3fb8aa3b, v%d" % (M(p, 2), M(p, 2)))
    for p in range(2):
        g("v_exp_f32 v%d, v%d" % (M(p, 0), M(p, 0)))
        g("v_exp_f32 v%d, v%d" % (M(p, 2), M(p, 2)))
    for p in range(2):
        g("v_mul_f32 v%d, v%d, v%d" % (M(p, 0), M(p, 0), M(p, 1)))
        g("v_mul_f32 v%d, v%d, v%d" % (M(p, 2), M(p, 2), M(p, 3)))
    for p in range(2):
        g("v_add_f32 v%d, v%d, v%d" % (vt[3 + p], M(p, 0), M(p, 2)))
    for p in range(2):
        g("v_rcp_f32 v%d, v%d" % (vt[3 + p], vt[3 + p]))
    for p in range(2):
        g("v_mul_f32 v%d, v%d, v%d" % (wt + 2 * p, M(p, 0), vt[3 + p]))
        g("v_mul_f32 v%d, v%d, v%d" % (wt + 2 * p + 1, M(p, 2), vt[3 + p]))
    acc = vW + 32
    for t in range(4):
        for k in range(4):
            g("%s v%d, v%d, v%d" % ("v_mul_f32" if t == 0 else "v_fmac_f32", acc + k, wt + t, vYL + 4 * t + k))
    reduce_r(acc, vW + 36)
    round4(acc)
    for k in range(4):
        g("v_add_f32 v%d, v%d, v%d" % (acc + k, acc + k, vFa + 4 + k))
    round4(acc)
    for k in range(4):
        g("v_add_f32 v%d, v%d, v%d" % (acc + k, acc + k, vFa + k))
    g("v_cvt_pk_bf16_f32 v%d, v%d, v%d" % (acc, acc, acc + 1))
    g("v_cvt_pk_bf16_f32 v%d, v%d, v%d" % (acc + 1, acc + 2, acc + 3))
    g("s_mov_b64 exec, 15")
    g("buffer_store_dwordx2 %s, v%d, %s, s%d offen" % (V(acc, 2), vOo, S(sOUT), s_oo))
    g("s_mov_b64 exec, -1")
    g("s_branch L_FIN")

    g.label("L_SWAVE")
    if sprio: g("s_setprio %d" % sprio)
    g("s_lshl_b32 s%d, s%d, 5" % (s_t0, s_b))
    g("s_add_u32 s%d, s%d, s%d" % (s_t0, s_t0, s_h))
    g("s_lshl_b32 s%d, s%d, 1" % (s_t0, s_t0))
    g("s_add_u32 s%d, s%d, s%d" % (s_t0, s_t0, s_s))
    g("s_lshl_b32 s%d, s%d, 19" % (s_t0, s_t0))
    g("v_and_b32 v%d, 0xff, v0" % vKV)
    g("v_lshlrev_b32 v%d, 4, v%d" % (vKV, vKV))
    g("s_mov_b32 s%d, 0" % s_ld)
    g("s_mov_b32 s%d, 4096" % s_st)
    g("s_mov_b32 s%d, 0xcccccccc" % s_m1)
    g("s_mov_b32 s%d, 0xcccccccc" % (s_m1 + 1))
    g("s_mov_b32 s%d, 0xaaaaaaaa" % s_m0)
    g("s_mov_b32 s%d, 0xaaaaaaaa" % (s_m0 + 1))
    g("s_waitcnt lgkmcnt(0)")
    srd(sISS, P + 2, s_t0, 1 << 19)
    srd(sV, P + 4, s_t0, 1 << 19)
    srd(sWS, P + 22, None, (TS + 0x100000) if stamps else WS_BYTES)
    masks_and_pub()
    if b0:
        g("s_barrier")
    for i in range(R):
        g("buffer_load_dwordx4 %s, v%d, %s, s%d offen%s" % (V(vR + 4 * i), vKV, S(sISS), s_ld, NT))
        g("s_add_u32 s%d, s%d, s%d" % (s_ld, s_ld, s_st))
    stamp(0)
    g("v_lshlrev_b32 v%d, 3, v%d" % (vt[3], vL))
    g("v_bfe_u32 v%d, v0, 6, 2" % vt[0])
    g("v_lshlrev_b32 v%d, 8, v%d" % (vt[4], vt[0]))
    g("v_lshl_add_u32 v%d, v%d, 2, v%d" % (vt[5], vL, vt[4]))
    g("v_and_b32 v%d, 15, v0" % vt[2])
    g("v_lshl_add_u32 v%d, v%d, 4, v%d" % (vt[4], vt[2], vt[4]))
    g("s_waitcnt vmcnt(%d)" % R)
    stamp(1)
    g("s_barrier")
    stamp(2)
    for k in range(4):
        g("ds_read_b64 %s, v%d offset:%d" % (V(vP + 2 * k, 2), vt[3], QP + 512 * k))
    g("s_waitcnt lgkmcnt(0)")
    for step in (4, 2):
        for k in range(0, step):
            g("v_add_f32 v%d, v%d, v%d" % (vP + k, vP + k, vP + k + step))
    g("v_cvt_pk_bf16_f32 v%d, v%d, v%d" % (vP, vP, vP + 1))
    g("ds_write_b32 v%d, v%d offset:%d" % (vt[5], vP, QB))
    g("s_waitcnt lgkmcnt(0)")
    g("ds_read_b128 %s, v%d offset:%d" % (V(vQ), vt[4], QB))
    g("s_mov_b32 s%d, 0" % s_it)
    g("s_waitcnt lgkmcnt(0)")
    stamp(3)
    g.label("L_KLOOP")
    for grp in range(GPI):
        for i in range(16):
            pos = grp * 16 + i
            b = vR + 4 * (pos % R)
            if pos == (G - R) % G:
                g("s_cmp_eq_u32 s%d, %d" % (s_it, NIT - 1))
                g("s_cselect_b32 s%d, s%d, s%d" % (sISS, sV, sISS))
                g("s_cselect_b32 s%d, s%d, s%d" % (sISS + 1, sV + 1, sISS + 1))
                g("s_cselect_b32 s%d, 0, s%d" % (s_ld, s_ld))
            g("s_waitcnt vmcnt(%d)" % (RE - 1))
            g("v_dot2_f32_bf16 v%d, v%d, v%d, 0" % (vP + i, b, vQ))
            for k in range(1, 4):
                g("v_dot2_f32_bf16 v%d, v%d, v%d, v%d" % (vP + i, b + k, vQ + k, vP + i))
            g("buffer_load_dwordx4 %s, v%d, %s, s%d offen%s" % (V(b), vKV, S(sISS), s_ld, NT))
            g("s_add_u32 s%d, s%d, s%d" % (s_ld, s_ld, s_st))
        for i in range(8):
            g("v_add_f32_dpp v%d, v%d, v%d row_ror:8 row_mask:0xf bank_mask:0x3" % (vP + i, vP + i, vP + i))
        for i in range(8):
            g("v_add_f32_dpp v%d, v%d, v%d row_ror:8 row_mask:0xf bank_mask:0xc" % (vP + i, vP + i + 8, vP + i + 8))
        for i in range(4):
            g("v_add_f32_dpp v%d, v%d, v%d row_half_mirror row_mask:0xf bank_mask:0x5" % (vP + i, vP + i, vP + i))
        for i in range(4):
            g("v_add_f32_dpp v%d, v%d, v%d row_half_mirror row_mask:0xf bank_mask:0xa" % (vP + i, vP + i + 4, vP + i + 4))
        for i in range(4):
            g("v_add_f32_dpp v%d, v%d, v%d quad_perm:[2,3,0,1] row_mask:0xf bank_mask:0xf" % (vP + i, vP + i, vP + i))
        for k in range(4):
            g("v_mov_b32 v%d, v%d" % (vS + k, vS + k + 1))
        for i in range(2):
            g("v_cndmask_b32 v%d, v%d, v%d, s[%d:%d]" % (vP + i, vP + i, vP + i + 2, s_m1, s_m1 + 1))
        for k in range(4, 7):
            g("v_mov_b32 v%d, v%d" % (vS + k, vS + k + 1))
        for i in range(2):
            g("v_add_f32_dpp v%d, v%d, v%d quad_perm:[1,0,3,2] row_mask:0xf bank_mask:0xf" % (vP + i, vP + i, vP + i))
        g("v_cndmask_b32 v%d, v%d, v%d, s[%d:%d]" % (vS + 7, vP, vP + 1, s_m0, s_m0 + 1))
    g("s_add_u32 s%d, s%d, 1" % (s_it, s_it))
    g("s_cmp_lt_u32 s%d, %d" % (s_it, NIT))
    g("s_cbranch_scc1 L_KLOOP")
    stamp(4)
    for k in range(0, 8, 2):
        g("v_cvt_pk_bf16_f32 v%d, v%d, v%d" % (vS + k, vS + k, vS + k + 1))
    for k in range(0, 8, 2):
        unpack2(vS + k, vS + k + 1, vS + k)
    for k in range(8):
        g("v_mul_f32 v%d, 0x3db504f3, v%d" % (vS + k, vS + k))
    for k in range(0, 8, 2):
        g("v_cvt_pk_bf16_f32 v%d, v%d, v%d" % (vS + k, vS + k, vS + k + 1))
    for k in range(0, 8, 2):
        unpack2(vS + k, vS + k + 1, vS + k)
    mx = vt[0]
    g("v_max3_f32 v%d, v%d, v%d, v%d" % (mx, vS, vS + 1, vS + 2))
    g("v_max3_f32 v%d, v%d, v%d, v%d" % (vt[1], vS + 3, vS + 4, vS + 5))
    g("v_max3_f32 v%d, v%d, v%d, v%d" % (mx, mx, vS + 6, vS + 7))
    g("v_max_f32 v%d, v%d, v%d" % (mx, mx, vt[1]))
    allreduce(mx, "v_max_f32", vt[1])
    for k in range(8):
        g("v_sub_f32 v%d, v%d, v%d" % (vS + k, vS + k, mx))
    for k in range(8):
        g("v_mul_f32 v%d, 0x3fb8aa3b, v%d" % (vS + k, vS + k))
    for k in range(8):
        g("v_exp_f32 v%d, v%d" % (vS + k, vS + k))
    g("v_bfe_u32 v%d, v0, 6, 2" % vt[2])
    g("v_lshlrev_b32 v%d, 2, v%d" % (vt[2], vt[2]))
    g("ds_write_b32 v%d, v%d offset:%d" % (vt[2], mx, MX))
    g("v_add_f32 v%d, v%d, v%d" % (vt[1], vS, vS + 1))
    g("v_add_f32 v%d, v%d, v%d" % (vt[3], vS + 2, vS + 3))
    g("v_add_f32 v%d, v%d, v%d" % (vt[4], vS + 4, vS + 5))
    g("v_add_f32 v%d, v%d, v%d" % (vt[5], vS + 6, vS + 7))
    g("v_add_f32 v%d, v%d, v%d" % (vt[1], vt[1], vt[3]))
    g("v_add_f32 v%d, v%d, v%d" % (vt[4], vt[4], vt[5]))
    for k in range(8):
        g("v_cvt_pk_bf16_f32 v%d, v%d, v%d" % (vS + k, vS + k, vS + k))
    g("v_add_f32 v%d, v%d, v%d" % (vP, vt[1], vt[4]))
    for k in range(4):
        g("v_mov_b32 v%d, 0" % (vACC + k))
    g("s_mov_b32 s%d, 0" % s_it)
    stamp(5)
    g.label("L_VLOOP")
    for grp in range(GPI):
        sparseA(vA[0], vS, 0)
        for i in range(16):
            pos = grp * 16 + i
            b = vR + 4 * (pos % R)
            if i < 15:
                sparseA(vA[(i + 1) & 1], vS, i + 1)
            g("s_waitcnt vmcnt(%d)" % (RE - 1))
            g("v_mfma_f32_16x16x32_bf16 %s, %s, %s, %s" % (V(vACC), V(vA[i & 1]), V(b), V(vACC)))
            g("buffer_load_dwordx4 %s, v%d, %s, s%d offen%s" % (V(b), vKV, S(sV), s_ld, NT))
            g("s_add_u32 s%d, s%d, s%d" % (s_ld, s_ld, s_st))
        for k in range(7):
            g("v_mov_b32 v%d, v%d" % (vS + k, vS + k + 1))
    g("s_add_u32 s%d, s%d, 1" % (s_it, s_it))
    g("s_cmp_eq_u32 s%d, 1" % s_it)
    g("s_cbranch_scc0 L_NOL")
    allreduce(vP, "v_add_f32", vt[1])
    g("ds_write_b32 v%d, v%d offset:%d" % (vt[2], vP, LS))
    g("v_bfe_u32 v%d, v0, 6, 2" % vt[0])
    g("v_lshl_add_u32 v%d, v%d, 5, v%d" % (vt[1], vt[0], vLA))
    g("v_and_b32 v%d, 0xff, v0" % vt[3])
    g("v_lshlrev_b32 v%d, 4, v%d" % (vt[3], vt[3]))
    g.label("L_NOL")
    g("s_cmp_lt_u32 s%d, %d" % (s_it, NIT))
    g("s_cbranch_scc1 L_VLOOP")
    stamp(6)
    g("s_mov_b32 exec_hi, 0")
    g("ds_write_b128 v%d, %s offset:%d" % (vt[1], V(vACC), OP))
    g("s_mov_b32 exec_hi, -1")
    g("s_waitcnt lgkmcnt(0)")
    g("s_barrier")
    g("s_barrier")
    stamp(7)
    g("s_cmp_ge_u32 s%d, 7" % s_w)
    g("s_cbranch_scc1 L_FIN")
    g("v_cmp_gt_u32 vcc, 0x%x, v0" % (256 + 160))
    g("s_and_saveexec_b64 s[%d:%d], vcc" % (s_ex, s_ex + 1))
    for k in range(4):
        g("ds_read_b128 %s, v%d offset:%d" % (V(vP + 4 * k), vt[3], YP + 2560 * k))
    g("s_waitcnt lgkmcnt(0)")
    for step in (8, 4):
        for k in range(step):
            g("v_add_f32 v%d, v%d, v%d" % (vP + k, vP + k, vP + k + step))
    for k in range(4):
        g("v_min_u32 v%d, -2, v%d" % (vP + k, vP + k))
    g("buffer_store_dwordx4 %s, v%d, %s, 0 offen sc1" % (V(vP), vPUB, S(sWS)))
    g("s_mov_b64 exec, -1")
    g.label("L_FIN")
    if stamps:
        stamp(10)
        g("s_waitcnt lgkmcnt(0)")
        g("s_lshl_b32 s%d, s2, 3" % s_t0)
        g("s_add_u32 s%d, s%d, s%d" % (s_t0, s_t0, s_w))
        g("s_lshl_b32 s%d, s%d, 6" % (s_t0, s_t0))
        g("s_add_u32 s%d, s%d, 0x%x" % (s_t0, s_t0, TS))
        g("v_mov_b32 v1, 0")
        g("s_mov_b64 exec, 1")
        for k in range(12):
            g("v_mov_b32 v2, s%d" % (s_ts + 2 * k if k < 11 else 98))
            g("buffer_store_dword v2, v1, %s, s%d offen offset:%d" % (S(sWS), s_t0, 4 * k))
    g.label("L_END")
    g("s_endpgm")
    g.raw('.section .rodata,"a"')
    g.raw(".p2align 6")
    g.raw(".amdhsa_kernel %s_kernel" % NAME)
    g.raw("  .amdhsa_next_free_vgpr %d" % NVGPR)
    g.raw("  .amdhsa_next_free_sgpr 100")
    g.raw("  .amdhsa_accum_offset %d" % ((NVGPR + 3) // 4 * 4))
    g.raw("  .amdhsa_group_segment_fixed_size 0")
    g.raw("  .amdhsa_kernarg_size 96")
    g.raw("  .amdhsa_user_sgpr_count 2")
    g.raw("  .amdhsa_user_sgpr_kernarg_segment_ptr 1")
    g.raw("  .amdhsa_system_sgpr_workgroup_id_x 1")
    g.raw(".end_amdhsa_kernel")
    return g.text()


if __name__ == "__main__":
    ap = argparse.ArgumentParser()
    ap.add_argument("-o", default="cdna_kernels/%s.s" % NAME)
    ap.add_argument("--R", type=int, default=16)
    ap.add_argument("--RE", type=int, default=None)
    ap.add_argument("--HB", type=int, default=4)
    ap.add_argument("--no-nt", action="store_true")
    ap.add_argument("--no-b0", action="store_true")
    ap.add_argument("--stamps", action="store_true")
    ap.add_argument("--wnt", action="store_true")
    ap.add_argument("--pf", type=lambda x: int(x, 0), default=0)
    ap.add_argument("--hprio", type=int, default=0)
    ap.add_argument("--sprio", type=int, default=0)
    a = ap.parse_args()
    open(a.o, "w").write(build(R=a.R, nt=not a.no_nt, stamps=a.stamps, HB=a.HB, b0=not a.no_b0, hprio=a.hprio, sprio=a.sprio, RE=a.RE, wnt=a.wnt, pf=a.pf))
```
